```python
import torch

def _softmax(x, axis=-1):
    return torch.softmax(x, dim=axis)
def _gelu(x):
    return torch.nn.functional.gelu(x, approximate="tanh")
def _silu(x):
    return torch.nn.functional.silu(x)
def _sigmoid(x):
    return torch.sigmoid(x)
def _layernorm(x, axis=-1, eps=1e-5):
    m = x.mean(dim=axis, keepdim=True)
    v = x.var(dim=axis, keepdim=True, unbiased=False)
    return (x - m) / torch.sqrt(v + eps)
def _scatter_add(tgt, idx, src, axis=0):
    return tgt.clone().index_add_(axis, idx, src)
def _segment_sum(src, seg, n):
    out = torch.zeros((n,) + src.shape[1:], dtype=src.dtype)
    return out.index_add_(0, seg, src)
def _pad(x, pw):
    flat = tuple(v for pair in reversed(pw) for v in pair)
    return torch.nn.functional.pad(x, flat)

kernel_name = 'standalone__glu_gated_reglu__decode'

def setup_inputs():

    _w = (lambda a: (lambda t: t.to(torch.bfloat16) if t.is_floating_point() else t)(torch.as_tensor(a)))
    B, S, D, F = 1, 1, 1024, 3584
    return {
        "x": _w((lambda *s: torch.randn(*s, dtype=torch.bfloat16) * 0.05)(B, S, D)),
        "W_gate": _w((lambda *s: torch.randn(*s, dtype=torch.bfloat16) * 0.05)(D, F) * (2.0 / D) ** 0.5),
        "W_up": _w((lambda *s: torch.randn(*s, dtype=torch.bfloat16) * 0.05)(D, F) * (2.0 / D) ** 0.5),
        "W_down": _w((lambda *s: torch.randn(*s, dtype=torch.bfloat16) * 0.05)(F, D) * (1.0 / F) ** 0.5),
    }

def reference(x, W_gate, W_up, W_down):
    gate = torch.einsum("bsd,df->bsf", x, W_gate)
    up = torch.einsum("bsd,df->bsf", x, W_up)
    gate = gate * (lambda x, dt: x.to(dt))(gate > 0, gate.dtype)
    h = gate * up
    return torch.einsum("bsf,fd->bsd", h, W_down)
```

```python
NAME = "standalone__glu_gated_reglu__decode"
HDR = """; Kernarg layout for this problem (56 bytes, ptrs only, base s[0:1]):
"""
class Asm:
    def __init__(self):
        self.lines = []
    def __call__(self, s=""):
        for l in s.split("\n"):
            self.lines.append("    " + l.strip() if l.strip() and not l.strip().endswith(":") else l.strip())
    def text(self):
        return "\n".join(self.lines) + "\n"

def kd(name, vgpr, sgpr, accum=None):
    if accum is None:
        accum = (vgpr + 3) // 4 * 4
    return f""".section .rodata,"a"
.p2align 6
.amdhsa_kernel {name}
  .amdhsa_next_free_vgpr {vgpr}
  .amdhsa_next_free_sgpr {sgpr}
  .amdhsa_accum_offset {accum}
  .amdhsa_group_segment_fixed_size 0
  .amdhsa_kernarg_size 56
  .amdhsa_user_sgpr_count 2
  .amdhsa_user_sgpr_kernarg_segment_ptr 1
  .amdhsa_system_sgpr_workgroup_id_x 1
  .amdhsa_float_denorm_mode_32 3
  .amdhsa_float_denorm_mode_16_64 3
.end_amdhsa_kernel
"""
def entry(name):
    return f""".text
.globl {name}
.p2align 8
.type {name},@function
{name}:
"""
```

```python
import sys
from common import *
NT = " nt" if "nt" in sys.argv else ""
WB = 7340032
a = Asm()
a("s_load_dwordx8 s[4:11], s[0:1], 0")
a("s_load_dwordx2 s[12:13], s[0:1], 48")
a("s_cmp_ge_u32 s2, 224")
a("s_cbranch_scc1 L_k1_end")
a("s_and_b32 s3, s2, 7")
a("s_mul_i32 s3, s3, 28")
a("s_lshr_b32 s14, s2, 3")
a("s_add_u32 s3, s3, s14")
a("v_lshrrev_b32 v2, 1, v0")
a("v_mul_u32_u24 v1, 57344, v2")
a("v_and_b32 v3, 1, v0")
a("v_lshl_add_u32 v1, v3, 4, v1")
a("s_lshl_b32 s14, s3, 5")
a("v_add_u32 v1, s14, v1")
a("v_lshlrev_b32 v2, 4, v2")
a("v_and_b32 v4, 127, v0")
a("v_lshlrev_b32 v4, 4, v4")
a("v_lshrrev_b32 v5, 7, v0")
a("v_lshl_add_u32 v4, v5, 14, v4")
a("s_lshl_b32 s14, s3, 15")
a("v_add_u32 v4, s14, v4")
for i in range(1, 8):
    a(f"s_mov_b32 s{40+i}, {i*7168}")
a("s_movk_i32 s50, 0x1000")
a("s_movk_i32 s51, 0x2000")
a("s_movk_i32 s52, 0x3000")
a("s_mov_b32 s53, 0x05040100")
a("s_mov_b32 s54, 0x07060302")
a("s_waitcnt lgkmcnt(0)")
def srd(d, b, n):
    a(f"s_mov_b32 s{d}, s{b}")
    a(f"s_mov_b32 s{d+1}, s{b+1}")
    a(f"s_mov_b32 s{d+2}, {n}")
    a(f"s_mov_b32 s{d+3}, 0x00020000")
srd(20, 6, WB); srd(16, 4, 2048); srd(24, 8, WB); srd(28, 10, WB); srd(32, 12, 224*4096)
a("buffer_load_dwordx4 v[8:11], v2, s[16:19], 0 offen")
for i in range(8):
    so = "0" if i == 0 else f"s{40+i}"
    a(f"buffer_load_dwordx4 v[{16+4*i}:{19+4*i}], v1, s[20:23], {so} offen{NT}")
    a(f"buffer_load_dwordx4 v[{48+4*i}:{51+4*i}], v1, s[24:27], {so} offen{NT}")
for i in range(8):
    so = ["0", "s50", "s51", "s52"][i >> 1]
    off = " offset:2048" if i & 1 else ""
    a(f"buffer_load_dwordx4 v[{80+4*i}:{83+4*i}], v4, s[28:31], {so} offen{off}{NT}")
for r in range(112, 128):
    a(f"v_mov_b32 v{r}, 0")
for k in range(4):
    a(f"s_waitcnt vmcnt({24 - (4*k+4)})")
    for m, base, acc in ((0, 16, 112), (1, 48, 120)):
        r0 = base + 8*k; r1 = r0 + 4
        for d in range(4):
            a(f"v_perm_b32 v12, v{r1+d}, v{r0+d}, s53")
            a(f"v_perm_b32 v13, v{r1+d}, v{r0+d}, s54")
            a(f"v_dot2c_f32_bf16 v{acc+2*d}, v12, v{8+k}")
            a(f"v_dot2c_f32_bf16 v{acc+2*d+1}, v13, v{8+k}")
a("s_nop 2")
for k in range(8):
    a(f"v_permlane32_swap_b32 v{112+k}, v{120+k}")
for k in range(8):
    a(f"v_add_f32 v{112+k}, v{112+k}, v{120+k}")
a("s_nop 1")
for k in range(4):
    a(f"v_permlane16_swap_b32 v{112+k}, v{116+k}")
for k in range(4):
    a(f"v_add_f32 v{112+k}, v{112+k}, v{116+k}")
for ror in (8, 4, 2):
    a("s_nop 1")
    for k in range(4):
        a(f"v_add_f32_dpp v{112+k}, v{112+k}, v{112+k} row_ror:{ror} row_mask:0xf bank_mask:0xf")
a("v_and_b32 v12, 63, v0")
a("v_lshrrev_b32 v13, 4, v12")
a("v_lshrrev_b32 v14, 1, v13")
a("v_lshlrev_b32 v14, 8, v14")
a("v_and_b32 v13, 1, v13")
a("v_lshl_add_u32 v14, v13, 6, v14")
a("v_lshl_add_u32 v14, v3, 7, v14")
a("v_lshrrev_b32 v13, 6, v0")
a("v_lshl_add_u32 v14, v13, 2, v14")
a("v_and_b32 v12, 15, v0")
a("v_cmp_gt_u32 vcc, 2, v12")
a("s_and_saveexec_b64 s[36:37], vcc")
for k in range(4):
    a(f"ds_write_b32 v14, v{112+k} offset:{16*k}")
a("s_mov_b64 exec, s[36:37]")
a("v_lshlrev_b32 v12, 4, v12")
a("s_waitcnt lgkmcnt(0)")
a("s_barrier")
a("ds_read_b128 v[112:115], v12")
a("ds_read_b128 v[116:119], v12 offset:256")
a("s_waitcnt lgkmcnt(0)")
a("v_add_f32 v112, v112, v113")
a("v_add_f32 v114, v114, v115")
a("v_add_f32 v116, v116, v117")
a("v_add_f32 v118, v118, v119")
a("v_add_f32 v112, v112, v114")
a("v_add_f32 v116, v116, v118")
a("v_cvt_pk_bf16_f32 v112, v112, v116")
a("v_lshlrev_b32 v113, 16, v112")
a("v_and_b32 v114, 0xffff0000, v112")
a("v_cmp_lt_f32 vcc, 0, v113")
a("v_mov_b32 v115, 1.0")
a("s_nop 0")
a("v_cndmask_b32 v115, 0, v115, vcc")
a("v_mul_f32 v113, v113, v115")
a("v_mul_f32 v113, v113, v114")
a("s_nop 1")
a("v_mov_b32_dpp v114, v113 quad_perm:[1,0,3,2] row_mask:0xf bank_mask:0xf")
a("v_cvt_pk_bf16_f32 v113, v113, v114")
a("v_readfirstlane_b32 s38, v5")
a("s_lshl_b32 s38, s38, 3")
a("s_add_u32 s39, s38, 2")
a("s_add_u32 s40, s38, 4")
a("s_add_u32 s48, s38, 6")
a("s_nop 3")
a("v_readlane_b32 s56, v113, s38")
a("v_readlane_b32 s57, v113, s39")
a("v_readlane_b32 s58, v113, s40")
a("v_readlane_b32 s59, v113, s48")
for r in range(112, 120):
    a(f"v_mov_b32 v{r}, 0")
for k in range(4):
    a(f"s_waitcnt vmcnt({8 - (2*k+2)})")
    r0 = 80 + 8*k; r1 = r0 + 4
    for d in range(4):
        a(f"v_perm_b32 v12, v{r1+d}, v{r0+d}, s53")
        a(f"v_perm_b32 v13, v{r1+d}, v{r0+d}, s54")
        a(f"v_dot2c_f32_bf16 v{112+2*d}, s{56+k}, v12")
        a(f"v_dot2c_f32_bf16 v{112+2*d+1}, s{56+k}, v13")
a("v_and_b32 v12, 127, v0")
a("v_lshlrev_b32 v12, 5, v12")
a("s_cmp_eq_u32 s38, 0")
a("s_cbranch_scc1 L_k1_lo")
a("ds_write_b128 v12, v[112:115] offset:1024")
a("ds_write_b128 v12, v[116:119] offset:1040")
a("s_waitcnt lgkmcnt(0)")
a("s_barrier")
a("s_endpgm")
a("L_k1_lo:")
a("s_barrier")
a("ds_read_b128 v[120:123], v12 offset:1024")
a("ds_read_b128 v[124:127], v12 offset:1040")
a("s_lshl_b32 s14, s3, 12")
a("s_waitcnt lgkmcnt(0)")
for k in range(8):
    a(f"v_add_f32 v{112+k}, v{112+k}, v{120+k}")
a("buffer_store_dwordx4 v[112:115], v12, s[32:35], s14 offen")
a("buffer_store_dwordx4 v[116:119], v12, s[32:35], s14 offen offset:16")
a("L_k1_end:")
a("s_endpgm")
k1 = a.text()

b = Asm()
b("s_load_dwordx2 s[4:5], s[0:1], 32")
b("s_load_dwordx2 s[12:13], s[0:1], 48")
b("s_cmp_ge_u32 s2, 64")
b("s_cbranch_scc1 L_k2_end")
b("v_and_b32 v1, 3, v0")
b("v_lshrrev_b32 v2, 2, v0")
b("v_lshlrev_b32 v3, 12, v2")
b("v_lshl_add_u32 v3, v1, 4, v3")
b("s_lshl_b32 s3, s2, 6")
b("v_add_u32 v3, s3, v3")
b("s_mov_b32 s20, 0x40000")
b("s_mov_b32 s21, 0x80000")
b("s_mov_b32 s22, 0xc0000")
b("s_waitcnt lgkmcnt(0)")
b("s_mov_b32 s14, %d" % (224*4096))
b("s_mov_b32 s15, 0x00020000")
b("s_mov_b32 s6, 2048")
b("s_mov_b32 s7, 0x00020000")
b("buffer_load_dwordx4 v[4:7], v3, s[12:15], 0 offen")
b("buffer_load_dwordx4 v[8:11], v3, s[12:15], s20 offen")
b("buffer_load_dwordx4 v[12:15], v3, s[12:15], s21 offen")
b("buffer_load_dwordx4 v[16:19], v3, s[12:15], s22 offen")
b("s_waitcnt vmcnt(0)")
for k in range(4):
    b(f"v_add_f32 v{4+k}, v{4+k}, v{8+k}")
    b(f"v_add_f32 v{12+k}, v{12+k}, v{16+k}")
for k in range(4):
    b(f"v_add_f32 v{4+k}, v{4+k}, v{12+k}")
b("s_nop 1")
b("v_permlane32_swap_b32 v4, v5")
b("v_permlane32_swap_b32 v6, v7")
b("v_add_f32 v4, v4, v5")
b("v_add_f32 v6, v6, v7")
b("s_nop 1")
b("v_permlane16_swap_b32 v4, v6")
b("v_add_f32 v4, v4, v6")
b("s_nop 1")
b("v_add_f32_dpp v4, v4, v4 row_ror:8 row_mask:0xf bank_mask:0xf")
b("s_nop 1")
b("v_add_f32_dpp v4, v4, v4 row_ror:4 row_mask:0xf bank_mask:0xf")
b("v_and_b32 v8, 63, v0")
b("v_lshrrev_b32 v9, 4, v8")
b("v_lshrrev_b32 v10, 1, v9")
b("v_and_b32 v9, 1, v9")
b("v_lshl_add_u32 v10, v9, 1, v10")
b("v_lshl_add_u32 v10, v1, 2, v10")
b("v_lshlrev_b32 v10, 4, v10")
b("v_lshrrev_b32 v9, 6, v0")
b("v_lshl_add_u32 v10, v9, 2, v10")
b("v_and_b32 v8, 15, v0")
b("v_cmp_gt_u32 vcc, 4, v8")
b("s_and_saveexec_b64 s[24:25], vcc")
b("ds_write_b32 v10, v4")
b("s_mov_b64 exec, s[24:25]")
b("s_waitcnt lgkmcnt(0)")
b("s_barrier")
b("v_cmp_gt_u32 vcc, 16, v0")
b("s_and_saveexec_b64 s[24:25], vcc")
b("s_cbranch_execz L_k2_end")
b("v_lshlrev_b32 v8, 4, v0")
b("ds_read_b128 v[4:7], v8")
b("v_lshlrev_b32 v9, 1, v0")
b("s_lshl_b32 s3, s2, 5")
b("s_waitcnt lgkmcnt(0)")
b("v_add_f32 v4, v4, v5")
b("v_add_f32 v6, v6, v7")
b("v_add_f32 v4, v4, v6")
b("v_cvt_pk_bf16_f32 v4, v4, v4")
b("buffer_store_short v4, v9, s[4:7], s3 offen")
b("L_k2_end:")
b("s_endpgm")
k2 = b.text()

out = HDR
out += f"; @launch kernel={NAME}_kernel grid=(224,1,1) block=(256,1,1) lds=5120\n"
out += f"; @launch kernel=glu_reduce_kernel grid=(64,1,1) block=(256,1,1) lds=256\n"
out += '.amdgcn_target "amdgcn-amd-amdhsa--gfx950"\n'
out += entry(NAME + "_kernel") + k1 + entry("glu_reduce_kernel") + k2
out += kd(NAME + "_kernel", 128, 64) + kd("glu_reduce_kernel", 24, 32)
print(out)
```

```python
import sys
from common import *
opts = set(sys.argv[1:])
NT = " nt" if "nt" in opts else ""
STAMPS = "stamps" in opts
FAST = "nofast" not in opts
AMP = [int(o[3:]) for o in opts if o.startswith("amp")]
AMP = AMP[0] if AMP else None
WB = 7340032
P1_OFF = 0x1000
P2A_OFF = 0x40000
P2B_OFF = 0xC0000
WS_BYTES = 0x140000
SPIN = 1 << 18
NFAST = 24
a = Asm()
def stamp(k):
    if STAMPS: a(f"s_memrealtime s[{64+2*k}:{65+2*k}]")
if AMP is not None: a("s_memrealtime s[90:91]")
stamp(0)
a("s_load_dwordx2 s[32:33], s[0:1], 48")
a("s_load_dwordx2 s[16:17], s[0:1], 0")
a("s_load_dwordx2 s[20:21], s[0:1], 8")
a("s_load_dwordx2 s[24:25], s[0:1], 16")
a("s_load_dwordx2 s[28:29], s[0:1], 24")
a("s_load_dwordx2 s[36:37], s[0:1], 32")
a("s_cmp_ge_u32 s2, 224")
a("s_cbranch_scc1 L_end")
a("s_and_b32 s3, s2, 7")
a("s_lshr_b32 s4, s2, 3")
for d, n in ((16, 2048), (20, WB), (24, WB), (28, WB), (32, WS_BYTES), (36, 2048)):
    a(f"s_mov_b32 s{d+2}, {n}")
    a(f"s_mov_b32 s{d+3}, 0x00020000")
a("v_lshrrev_b32 v2, 4, v0")
a("v_and_b32 v3, 15, v0")
a("v_lshlrev_b32 v5, 4, v3")
a("v_mul_u32_u24 v1, 57344, v2")
a("s_mul_i32 s5, s3, %d" % (128*7168))
a("s_lshl_b32 s6, s4, 8")
a("s_add_u32 s5, s5, s6")
a("v_add3_u32 v1, v1, v5, s5")
a("s_lshl_b32 s6, s4, 18")
a("s_lshl_b32 s7, s3, 8")
a("s_add_u32 s6, s6, s7")
a("v_lshl_add_u32 v4, v2, 14, v5")
a("v_add_u32 v4, s6, v4")
a("v_lshl_add_u32 v6, v2, 4, s7")
a("v_mov_b32 v7, 0")
for i in range(1, 8):
    a(f"s_mov_b32 s{40+i}, {i*7168}")
a("s_movk_i32 s50, 0x1000")
a("s_movk_i32 s51, 0x2000")
a("s_movk_i32 s52, 0x3000")
a("s_mov_b32 s53, 0x05040100")
a("s_mov_b32 s54, 0x07060302")
a("s_movk_i32 s55, 0x3ff")
a("v_readfirstlane_b32 s8, v0")
a("s_lshr_b32 s8, s8, 6")
a("s_waitcnt lgkmcnt(0)")
stamp(1)
G, U, D, ACC = 16, 48, 80, 112
a("buffer_load_dword v12, v7, s[32:35], 0 offen sc1")
a("buffer_load_dwordx4 v[8:11], v6, s[16:19], 0 offen")
for i in range(8):
    so = "0" if i == 0 else f"s{40+i}"
    a(f"buffer_load_dwordx4 v[{G+4*i}:{G+3+4*i}], v1, s[20:23], {so} offen{NT}")
    a(f"buffer_load_dwordx4 v[{U+4*i}:{U+3+4*i}], v1, s[24:27], {so} offen{NT}")
for i in range(8):
    so = ["0", "s50", "s51", "s52"][i >> 1]
    off = " offset:2048" if i & 1 else ""
    a(f"buffer_load_dwordx4 v[{D+4*i}:{D+3+4*i}], v4, s[28:31], {so} offen{off}{NT}")
NPRE = 0
a("s_mul_i32 s9, s8, 28")
a("s_add_u32 s9, s9, s4")
a("s_lshl_b32 s10, s3, 5")
a("s_add_u32 s10, s10, s9")
a("s_mul_i32 s10, s10, 1792")
a("s_add_u32 s10, s10, %d" % P2A_OFF)
a("v_and_b32 v13, 63, v0")
a("v_lshl_add_u32 v128, v13, 4, s10")
a("v_and_b32 v14, 7, v0")
a("v_lshlrev_b32 v14, 10, v14")
a("v_lshrrev_b32 v15, 3, v13")
a("v_lshl_add_u32 v14, v15, 4, v14")
a("s_lshl_b32 s11, s4, 13")
a("s_lshl_b32 s12, s8, 8")
a("s_add_u32 s11, s11, s12")
a("s_add_u32 s11, s11, %d" % P1_OFF)
a("v_add_u32 v129, s11, v14")
a("v_lshrrev_b32 v14, 2, v3")
a("v_lshlrev_b32 v14, 8, v14")
a("v_and_b32 v15, 3, v3")
a("v_lshl_add_u32 v14, v15, 5, v14")
a("v_bfe_u32 v15, v0, 5, 1")
a("v_lshl_add_u32 v14, v15, 7, v14")
a("v_bfe_u32 v15, v0, 4, 1")
a("v_lshl_add_u32 v14, v15, 4, v14")
a("s_lshl_b32 s11, s2, 10")
a("s_add_u32 s11, s11, %d" % P1_OFF)
a("v_add_u32 v130, s11, v14")
a("v_bfe_u32 v14, v0, 4, 2")
a("v_lshlrev_b32 v14, 3, v14")
a("v_lshrrev_b32 v15, 1, v3")
a("v_add_u32 v14, v14, v15")
a("v_mul_u32_u24 v14, 1792, v14")
a("s_mul_i32 s11, s3, %d" % (32*1792))
a("s_lshl_b32 s12, s4, 6")
a("s_lshl_b32 s13, s8, 4")
a("s_add_u32 s11, s11, s12")
a("s_add_u32 s11, s11, s13")
a("s_add_u32 s11, s11, %d" % P2A_OFF)
a("v_add_u32 v131, s11, v14")
a("v_lshlrev_b32 v132, 4, v0")
a("v_lshlrev_b32 v133, 4, v13")
if FAST:
    a("s_cmp_ge_u32 s9, 32")
    a("s_cbranch_scc1 L_noprewarm")
    a("buffer_load_dword v14, v128, s[32:35], 0 offen sc1")
    a("buffer_load_dword v15, v128, s[32:35], 0 offen offset:896 sc1")
    a("s_branch L_prewarmed")
    a("L_noprewarm:")
    a("buffer_load_dword v14, v7, s[32:35], 0 offen sc1")
    a("buffer_load_dword v15, v7, s[32:35], 0 offen sc1")
    a("L_prewarmed:")
    NPRE = 2
for r in range(ACC, ACC+16):
    a(f"v_mov_b32 v{r}, 0")
tot = 2 + 16 + 8 + NPRE
for k in range(4):
    a(f"s_waitcnt vmcnt({tot - 2 - (4*k+4)})")
    if k == 0:
        a("v_add_u32 v12, 1, v12")
        a("v_and_b32 v134, s55, v12")
        a("v_bfe_u32 v135, v12, 10, 10")
        a("v_xor_b32 v136, s55, v134")
        a("v_bfe_u32 v137, v12, 20, 10")
    for base, acc in ((G, ACC), (U, ACC+8)):
        r0 = base + 8*k; r1 = r0 + 4
        for d in range(4):
            a(f"v_perm_b32 v2, v{r1+d}, v{r0+d}, s53")
            a(f"v_perm_b32 v5, v{r1+d}, v{r0+d}, s54")
            a(f"v_dot2c_f32_bf16 v{acc+2*d}, v2, v{8+k}")
            a(f"v_dot2c_f32_bf16 v{acc+2*d+1}, v5, v{8+k}")
a("s_nop 2")
for k in range(8):
    a(f"v_permlane32_swap_b32 v{ACC+k}, v{ACC+8+k}")
for k in range(8):
    a(f"v_add_f32 v{ACC+k}, v{ACC+k}, v{ACC+8+k}")
a("s_nop 0")
for k in range(4):
    a(f"v_permlane16_swap_b32 v{ACC+k}, v{ACC+4+k}")
for k in range(4):
    a(f"v_add_f32 v{ACC+k}, v{ACC+k}, v{ACC+4+k}")
stamp(2)
a("s_cmp_eq_u32 s8, 3")
a("s_cbranch_scc1 L_pub1")
a(f"ds_write_b128 v132, v[{ACC}:{ACC+3}]")
a("s_waitcnt lgkmcnt(0)")
a("s_barrier")
a("s_branch L_pub1_done")
a("L_pub1:")
a("s_barrier")
a(f"ds_read_b128 v[{ACC+4}:{ACC+7}], v133")
a(f"ds_read_b128 v[{ACC+8}:{ACC+11}], v133 offset:1024")
a(f"ds_read_b128 v[{ACC+12}:{ACC+15}], v133 offset:2048")
a("s_waitcnt lgkmcnt(1)")
for k in range(4):
    a(f"v_add_f32 v{ACC+4+k}, v{ACC+4+k}, v{ACC+8+k}")
a("s_waitcnt lgkmcnt(0)")
for k in range(4):
    a(f"v_add_f32 v{ACC+k}, v{ACC+k}, v{ACC+12+k}")
for k in range(4):
    a(f"v_add_f32 v{ACC+k}, v{ACC+k}, v{ACC+4+k}")
for k in range(4):
    a(f"v_bfi_b32 v{ACC+k}, s55, v{134+k}, v{ACC+k}")
a(f"buffer_store_dwordx4 v[{ACC}:{ACC+3}], v130, s[32:35], 0 offen sc1")
a("L_pub1_done:")
stamp(3)
PG, PU = 140, 144
def poll1():
    a(f"buffer_load_dwordx4 v[{PG}:{PG+3}], v129, s[32:35], 0 offen sc1")
    a(f"buffer_load_dwordx4 v[{PU}:{PU+3}], v129, s[32:35], 0 offen offset:128 sc1")
poll1()
a(f"s_waitcnt vmcnt(2)")
stamp(4)
for k in range(4):
    r0 = D + 8*k; r1 = r0 + 4
    for d in range(4):
        a(f"v_perm_b32 v{G+4*k+d}, v{r1+d}, v{r0+d}, s53")
        a(f"v_perm_b32 v{U+4*k+d}, v{r1+d}, v{r0+d}, s54")
for r in range(ACC, ACC+8):
    a(f"v_mov_b32 v{r}, 0")
a(f"s_mov_b32 s14, {SPIN}")
a("L_poll1:")
a("s_waitcnt vmcnt(0)")
for k in range(4):
    a(f"v_xor_b32 v{PG+k}, v{PG+k}, v{134+k}")
    a(f"v_xor_b32 v{PU+k}, v{PU+k}, v{134+k}")
a(f"v_or3_b32 v2, v{PG}, v{PG+1}, v{PG+2}")
a(f"v_or3_b32 v5, v{PU}, v{PU+1}, v{PU+2}")
a(f"v_or3_b32 v2, v2, v{PG+3}, v{PU+3}")
a(f"v_or_b32 v2, v2, v5")
a("v_and_b32 v2, s55, v2")
a("v_cmp_ne_u32 vcc, 0, v2")
a("s_cbranch_vccz L_poll1_ok")
a("s_sub_u32 s14, s14, 1")
a("s_cbranch_scc1 L_end")
poll1()
a("s_branch L_poll1")
a("L_poll1_ok:")
stamp(5)
for k in range(4):
    a(f"v_add_f32_dpp v{PG+k}, v{PG+k}, v{PG+k} row_half_mirror row_mask:0xf bank_mask:0x5")
for k in range(4):
    a(f"v_add_f32_dpp v{PG+k}, v{PU+k}, v{PU+k} row_half_mirror row_mask:0xf bank_mask:0xa")
for k in range(4):
    a(f"v_add_f32_dpp v{PG+k}, v{PG+k}, v{PG+k} quad_perm:[1,0,3,2] row_mask:0xf bank_mask:0xf")
for k in range(4):
    a(f"v_add_f32_dpp v{PG+k}, v{PG+k}, v{PG+k} quad_perm:[2,3,0,1] row_mask:0xf bank_mask:0xf")
a(f"v_cvt_pk_bf16_f32 v{PG}, v{PG}, v{PG+1}")
a(f"v_cvt_pk_bf16_f32 v{PG+1}, v{PG+2}, v{PG+3}")
a("s_nop 0")
a(f"v_mov_b32_dpp v{PU}, v{PG} row_half_mirror row_mask:0xf bank_mask:0xf")
a(f"v_mov_b32_dpp v{PU+1}, v{PG+1} row_half_mirror row_mask:0xf bank_mask:0xf")
a(f"v_lshlrev_b32 v148, 16, v{PG}")
a(f"v_and_b32 v149, 0xffff0000, v{PG}")
a(f"v_lshlrev_b32 v150, 16, v{PG+1}")
a(f"v_and_b32 v151, 0xffff0000, v{PG+1}")
a(f"v_lshlrev_b32 v152, 16, v{PU}")
a(f"v_and_b32 v153, 0xffff0000, v{PU}")
a(f"v_lshlrev_b32 v154, 16, v{PU+1}")
a(f"v_and_b32 v155, 0xffff0000, v{PU+1}")
a(f"v_pk_mul_f32 v[{PG}:{PG+1}], v[148:149], 0")
a(f"v_pk_mul_f32 v[{PG+2}:{PG+3}], v[150:151], 0")
for k in range(4):
    a(f"v_max_f32 v{148+k}, v{148+k}, v{PG+k}")
a("v_pk_mul_f32 v[148:149], v[148:149], v[152:153]")
a("v_pk_mul_f32 v[150:151], v[150:151], v[154:155]")
a(f"v_cvt_pk_bf16_f32 v{PG}, v148, v149")
a(f"v_cvt_pk_bf16_f32 v{PG+1}, v150, v151")
a("s_nop 1")
for k in range(4):
    src = PG + (k & 1); bc = 0 if k < 2 else 8
    for d in range(4):
        a(f"v_dot2c_f32_bf16_dpp v{ACC+2*d}, v{src}, v{G+4*k+d} row_newbcast:{bc} row_mask:0xf bank_mask:0xf")
        a(f"v_dot2c_f32_bf16_dpp v{ACC+2*d+1}, v{src}, v{U+4*k+d} row_newbcast:{bc} row_mask:0xf bank_mask:0xf")
a("s_nop 2")
for k in range(4):
    a(f"v_permlane32_swap_b32 v{ACC+k}, v{ACC+4+k}")
for k in range(4):
    a(f"v_add_f32 v{ACC+k}, v{ACC+k}, v{ACC+4+k}")
a("s_nop 0")
a(f"v_permlane16_swap_b32 v{ACC}, v{ACC+2}")
a(f"v_permlane16_swap_b32 v{ACC+1}, v{ACC+3}")
a(f"v_add_f32 v{ACC}, v{ACC}, v{ACC+2}")
a(f"v_add_f32 v{ACC+1}, v{ACC+1}, v{ACC+3}")
a("s_mov_b32 s56, 0x55555555")
a("s_mov_b32 s57, 0x55555555")
a(f"v_mov_b32_dpp v{ACC+2}, v{ACC} quad_perm:[1,1,3,3] row_mask:0xf bank_mask:0xf")
a(f"v_mov_b32_dpp v{ACC+3}, v{ACC+1} quad_perm:[1,1,3,3] row_mask:0xf bank_mask:0xf")
for k in range(4):
    a(f"v_bfi_b32 v{ACC+k}, s55, v{134+k}, v{ACC+k}")
a(f"s_mov_b32 s58, {P2B_OFF - P2A_OFF}")
a("s_mov_b64 exec, s[56:57]")
def storeB():
    a(f"buffer_store_dwordx4 v[{ACC}:{ACC+3}], v131, s[32:35], s58 offen sc1")
if FAST:
    a(f"buffer_store_dwordx4 v[{ACC}:{ACC+3}], v131, s[32:35], 0 offen")
    stamp(6)
    a("s_cmp_lt_u32 s9, 32")
    a("s_cbranch_scc1 L_cons")
    storeB()
    a("s_branch L_fin")
    a("L_cons:")
else:
    storeB()
    stamp(6)
    a("s_cmp_ge_u32 s9, 32")
    a("s_cbranch_scc1 L_fin")
a("s_mov_b32 s60, -1")
a("s_mov_b32 s61, 0x00ffffff")
a("s_mov_b64 exec, s[60:61]")
a(f"s_mov_b32 s14, {SPIN}")
a(f"s_mov_b32 s59, {0 if FAST else P2B_OFF - P2A_OFF}")
a("L_poll2:")
a(f"buffer_load_dwordx4 v[{PG}:{PG+3}], v128, s[32:35], s59 offen sc1")
a(f"buffer_load_dwordx4 v[{PU}:{PU+3}], v128, s[32:35], s59 offen offset:896 sc1")
a("s_sub_u32 s14, s14, 1")
a("s_cbranch_scc1 L_end")
if FAST:
    a(f"s_cmp_lg_u32 s14, {SPIN - NFAST}")
    a("s_cbranch_scc1 L_noswitch")
    a("s_mov_b64 exec, s[56:57]")
    storeB()
    a("s_mov_b64 exec, s[60:61]")
    a("s_mov_b32 s59, s58")
    a("L_noswitch:")
a("s_waitcnt vmcnt(0)")
for k in range(4):
    a(f"v_xor_b32 v{148+k}, v{PG+k}, v{134+k}")
    a(f"v_xor_b32 v{152+k}, v{PU+k}, v{134+k}")
a(f"v_or3_b32 v2, v148, v149, v150")
a(f"v_or3_b32 v5, v152, v153, v154")
a(f"v_or3_b32 v2, v2, v151, v155")
a(f"v_or_b32 v2, v2, v5")
a("v_and_b32 v2, s55, v2")
a("v_cmp_ne_u32 vcc, 0, v2")
a("s_cbranch_vccnz L_poll2")
if FAST:
    a("s_mov_b64 exec, s[56:57]")
    storeB()
    a("s_mov_b64 exec, s[60:61]")
a("v_pk_add_f32 v[148:149], v[148:149], v[152:153]")
a("v_pk_add_f32 v[150:151], v[150:151], v[154:155]")
a("s_not_b64 exec, s[60:61]")
for k in range(4):
    a(f"v_mov_b32 v{148+k}, 0")
a("s_mov_b64 exec, -1")
a("s_nop 1")
a("v_permlane32_swap_b32 v148, v150")
a("v_permlane32_swap_b32 v149, v151")
a("v_add_f32 v148, v148, v150")
a("v_add_f32 v149, v149, v151")
a("s_nop 1")
a("v_permlane16_swap_b32 v148, v149")
a("v_add_f32 v148, v148, v149")
for ror in (8, 4, 2, 1):
    a("s_nop 1")
    a(f"v_add_f32_dpp v148, v148, v148 row_ror:{ror} row_mask:0xf bank_mask:0xf")
a("s_and_b32 s10, s9, 7")
a("s_lshr_b32 s11, s9, 3")
a("s_lshl_b32 s10, s10, 5")
a("s_lshl_b32 s11, s11, 2")
a("s_add_u32 s10, s10, s11")
a("s_add_u32 s10, s10, s7")
a("v_bfe_u32 v2, v0, 4, 1")
a("v_bfe_u32 v5, v0, 5, 1")
a("v_lshlrev_b32 v2, 1, v2")
a("v_lshl_add_u32 v2, v5, 4, v2")
a("v_cvt_pk_bf16_f32 v148, v148, v148")
a("s_mov_b32 s56, 0x00010001")
a("s_mov_b32 s57, 0x00010001")
a("s_mov_b64 exec, s[56:57]")
a("buffer_store_short v148, v2, s[36:39], s10 offen")
a("s_cmp_lg_u32 s2, 0")
a("s_cbranch_scc1 L_fin")
a("s_cmp_lg_u32 s8, 0")
a("s_cbranch_scc1 L_fin")
a("buffer_store_dword v12, v7, s[32:35], 0 offen sc1")
a("L_fin:")
if AMP is not None:
    a("s_memrealtime s[92:93]")
    a("s_waitcnt lgkmcnt(0)")
    a("s_sub_u32 s94, s92, s90")
    a(f"s_mul_i32 s94, s94, {AMP}")
    a("s_add_u32 s94, s94, s92")
    a("L_amp:")
    a("s_memrealtime s[92:93]")
    a("s_waitcnt lgkmcnt(0)")
    a("s_sub_u32 s95, s92, s94")
    a("s_cmp_lt_i32 s95, 0")
    a("s_cbranch_scc1 L_amp")
if STAMPS:
    stamp(7)
    a("s_waitcnt vmcnt(0) lgkmcnt(0)")
    a("s_mov_b64 exec, 1")
    a("s_add_u32 s32, s32, 0x8000000"); a("s_addc_u32 s33, s33, 0")
    for k in range(16):
        a(f"v_mov_b32 v{16+k}, s{64+k}")
    a(f"s_lshl_b32 s14, s2, 8")
    a("v_add_u32 v1, s14, v0")
    for k in range(4):
        a(f"buffer_store_dwordx4 v[{16+4*k}:{19+4*k}], v1, s[32:35], 0 offen offset:{16*k}")
a("L_end:")
a("s_endpgm")
out = HDR + f"; @launch grid=(224,1,1) block=(256,1,1) lds=3072\n" + '.amdgcn_target "amdgcn-amd-amdhsa--gfx950"\n'
out += entry(NAME + "_kernel") + a.text() + kd(NAME + "_kernel", 156, 96)
print(out)
```

```python
import sys
from common import *
opts = set(sys.argv[1:])
def opt(name, default):
    for o in opts:
        if o.startswith(name + "="): return int(o[len(name)+1:])
    return default
NT = "" if "nont" in opts else " nt"
STAMPS = "stamps" in opts
FAST = "nofast" not in opts
NOB = "nob" in opts
AMP = opt("amp", None)
USH = opt("ush", 2)
DSCHED = opt("dsched", 1)
ACONT = "acont" in opts
EARLY = opt("early", 0)
KE = opt("ke", 3)
PN = opt("pn", 0)
ZPW = "zpw" in opts
POLLLATE = "polllate" in opts
PREWARM = "noprewarm" not in opts
TAGB = opt("tagb", 10)
TM = (1 << TAGB) - 1
WB = 7340032
PADSH = 1 if "p1pad" in opts else 0
P1_OFF = 0x1000
P2A_OFF = 0x80000
P2B_OFF = 0x100000
WS_BYTES = 0x180000
SPIN = 1 << 18
NFAST = 24
a = Asm()
AF = opt("af", 0); AT = opt("at", 7)
def stamp(k):
    if STAMPS: a(f"s_memrealtime s[{64+2*k}:{65+2*k}]")
    if AMP is not None and k == AF: a("s_memrealtime s[90:91]")
    if AMP is not None and k == AT and k != 7: a("s_memrealtime s[88:89]")
stamp(0)
a("s_load_dwordx2 s[32:33], s[0:1], 48")
a("s_load_dwordx2 s[16:17], s[0:1], 0")
a("s_load_dwordx2 s[20:21], s[0:1], 8")
a("s_load_dwordx2 s[24:25], s[0:1], 16")
a("s_load_dwordx2 s[28:29], s[0:1], 24")
a("s_load_dwordx2 s[36:37], s[0:1], 32")
a("s_cmp_ge_u32 s2, 224")
a("s_cbranch_scc1 L_end")
a("s_and_b32 s3, s2, 7")
a("s_lshr_b32 s4, s2, 3")
a(f"s_add_u32 s15, s4, {USH}")
a("s_cmp_ge_u32 s15, 28")
a("s_cselect_b32 s5, 28, 0")
a("s_sub_u32 s15, s15, s5")
a("v_lshrrev_b32 v2, 4, v0")
a("v_and_b32 v3, 15, v0")
a("v_lshlrev_b32 v5, 4, v3")
a("v_mul_u32_u24 v1, 57344, v2")
a("s_mul_i32 s5, s3, %d" % (128*7168))
a("v_add3_u32 v1, v1, v5, s5")
a("s_lshl_b32 s40, s4, 8")
a("s_lshl_b32 s80, s15, 8")
for i in range(1, 8):
    a(f"s_add_u32 s{40+i}, s40, {i*7168}")
    a(f"s_add_u32 s{80+i}, s80, {i*7168}")
a("s_lshl_b32 s7, s3, 8")
a("v_lshl_add_u32 v6, v2, 4, s7")
a("v_mov_b32 v7, 0")
for d, n in ((32, WS_BYTES), (16, 2048), (20, WB), (24, WB), (28, WB), (36, 2048)):
    a(f"s_mov_b32 s{d+2}, {n}")
    a(f"s_mov_b32 s{d+3}, 0x00020000")
a("s_waitcnt lgkmcnt(0)")
stamp(1)
G, U, D, ACC = 16, 48, 80, 112
a("buffer_load_dword v12, v7, s[32:35], 0 offen sc1")
a("buffer_load_dwordx4 v[8:11], v6, s[16:19], 0 offen")
for i in range(8):
    a(f"buffer_load_dwordx4 v[{G+4*i}:{G+3+4*i}], v1, s[20:23], s{40+i} offen{NT}")
    a(f"buffer_load_dwordx4 v[{U+4*i}:{U+3+4*i}], v1, s[24:27], s{80+i} offen{NT}")
a("v_readfirstlane_b32 s8, v0")
a("s_lshl_b32 s6, s4, 18")
a("s_add_u32 s6, s6, s7")
a("v_lshl_add_u32 v4, v2, 14, v5")
a("v_add_u32 v4, s6, v4")
a("s_lshr_b32 s8, s8, 6")
a("s_movk_i32 s50, 0x1000")
a("s_movk_i32 s51, 0x2000")
a("s_movk_i32 s52, 0x3000")
def down(i):
    if "nodown" in opts: return
    so = ["0", "s50", "s51", "s52"][i >> 1]
    off = " offset:2048" if i & 1 else ""
    a(f"buffer_load_dwordx4 v[{D+4*i}:{D+3+4*i}], v4, s[28:31], {so} offen{off}{NT}")
outst = ["e", "x"] + ["gu"] * 16
if DSCHED == 0:
    for i in range(8): down(i); outst.append("d")
if DSCHED == 4 and KE == -1:
    for i in range(EARLY): down(i); outst.append("d")
a("s_mov_b32 s53, 0x05040100")
a("s_mov_b32 s54, 0x07060302")
a(f"s_movk_i32 s55, {TM}")
a("s_mul_i32 s9, s8, 28")
a("s_add_u32 s9, s9, s4")
a("v_and_b32 v13, 63, v0")
CONTA = (x for x in [])
def cons_addr(vd, base, cont):
    if cont:
        a(f"s_mul_i32 s10, s3, 57344")
        a("s_lshl_b32 s11, s9, 4")
        a("s_add_u32 s10, s10, s11")
        a(f"s_add_u32 s10, s10, {base}")
        a(f"v_lshl_add_u32 v{vd}, v13, 9, s10")
    else:
        a("s_lshl_b32 s10, s3, 5")
        a("s_add_u32 s10, s10, s9")
        a("s_mul_i32 s10, s10, 1792")
        a(f"s_add_u32 s10, s10, {base}")
        a(f"v_lshl_add_u32 v{vd}, v13, 4, s10")
def prod_addr(vd, base, cont):
    a("s_mul_i32 s11, s3, 57344")
    a("s_lshl_b32 s12, s4, 2")
    a("s_add_u32 s12, s12, s8")
    a(f"s_lshl_b32 s12, s12, {9 if cont else 4}")
    a("s_add_u32 s11, s11, s12")
    a(f"s_add_u32 s11, s11, {base}")
    if cont:
        a(f"v_lshl_add_u32 v{vd}, v14, 4, s11")
    else:
        a(f"v_mul_u32_u24 v15, 1792, v14")
        a(f"v_add_u32 v{vd}, s11, v15")
cons_addr(128, P2A_OFF, ACONT)
cons_addr(138, P2B_OFF, True)
a("v_bfe_u32 v14, v0, 4, 2")
a("v_lshrrev_b32 v15, 1, v3")
a("v_lshl_add_u32 v14, v14, 3, v15")
prod_addr(131, P2A_OFF, ACONT)
prod_addr(139, P2B_OFF, True)
a(f"s_mov_b32 s58, {56*512}")
a(f"s_mov_b32 s59, {56*512 if ACONT else 896}")
a("v_and_b32 v14, 7, v0")
a(f"v_lshlrev_b32 v14, {10+PADSH}, v14")
a("v_lshrrev_b32 v15, 3, v13")
a("v_lshl_add_u32 v14, v15, 4, v14")
a(f"s_lshl_b32 s11, s4, {13+PADSH}")
a("s_lshl_b32 s12, s8, 8")
a("s_add_u32 s11, s11, s12")
a("s_add_u32 s11, s11, %d" % P1_OFF)
a("v_add_u32 v129, s11, v14")
a("v_lshrrev_b32 v14, 2, v3")
a("v_lshlrev_b32 v14, 8, v14")
a("v_and_b32 v15, 3, v3")
a("v_lshl_add_u32 v14, v15, 5, v14")
a("v_bfe_u32 v15, v0, 4, 1")
a("v_lshl_add_u32 v14, v15, 4, v14")
a("s_sub_u32 s12, s15, s4")
a(f"s_lshl_b32 s12, s12, {13+PADSH}")
a("s_add_u32 s12, s12, 128")
a("v_bfe_u32 v15, v0, 5, 1")
a("v_mul_lo_u32 v15, v15, s12")
a(f"s_lshl_b32 s11, s2, {10+PADSH}")
a("s_add_u32 s11, s11, %d" % P1_OFF)
a("v_add3_u32 v130, s11, v14, v15")
a("v_lshlrev_b32 v132, 4, v0")
a("v_lshlrev_b32 v133, 4, v13")
for r in range(ACC, ACC+16):
    a(f"v_mov_b32 v{r}, 0")
def wait_for(kind, count):
    idx = [i for i, k in enumerate(outst) if k == kind][count-1]
    a(f"s_waitcnt vmcnt({len(outst) - 1 - idx})")
def prewarm():
    if FAST and PREWARM and ZPW:
        a("s_cmp_ge_u32 s9, 32")
        a("s_cselect_b32 s10, 0x200000, 0")
        a("s_add_u32 s11, s10, s59")
        a("s_mov_b32 s60, -1")
        a("s_mov_b32 s61, 0x00ffffff")
        a("s_mov_b64 exec, s[60:61]")
        a(f"buffer_store_dwordx4 v[{ACC}:{ACC+3}], v128, s[32:35], s10 offen")
        a(f"buffer_store_dwordx4 v[{ACC}:{ACC+3}], v128, s[32:35], s11 offen")
        a("s_mov_b64 exec, -1")
        a("s_nop 0")
        outst.extend(["p", "p"])
    elif FAST and PREWARM:
        a("s_cmp_ge_u32 s9, 32")
        a("s_cselect_b32 s10, 0, -1")
        a("v_and_b32 v14, s10, v128")
        a("buffer_load_dword v15, v14, s[32:35], 0 offen sc1")
        a("buffer_load_dword v14, v14, s[32:35], s59 offen sc1")
        outst.extend(["p", "p"])
if ZPW: prewarm()
for k in range(4):
    wait_for("gu", 4*k+4)
    if k == 0 and not ZPW: prewarm()
    if k == 0 and "tlbwarm" in opts:
        a("buffer_load_dword v156, v129, s[32:35], 0 offen offset:1024 sc1"); outst.append("p")
        a("buffer_load_dword v157, v130, s[32:35], 0 offen offset:1024 sc1"); outst.append("p")
    if DSCHED == 1:
        down(2*k); down(2*k+1); outst.extend(["d", "d"])
    if DSCHED == 4 and k == KE:
        for i in range(EARLY): down(i); outst.append("d")
    if k == 0:
        a("v_add_u32 v12, 1, v12")
        a("v_and_b32 v134, s55, v12")
        a(f"v_bfe_u32 v135, v12, {TAGB}, {TAGB}")
        a("v_xor_b32 v136, s55, v134")
        a(f"v_bfe_u32 v137, v12, {2*TAGB}, {TAGB}")
    for base, acc in ((G, ACC), (U, ACC+8)):
        r0 = base + 8*k; r1 = r0 + 4
        for d in range(4):
            a(f"v_perm_b32 v2, v{r1+d}, v{r0+d}, s53")
            a(f"v_perm_b32 v5, v{r1+d}, v{r0+d}, s54")
            a(f"v_dot2c_f32_bf16 v{acc+2*d}, v2, v{8+k}")
            a(f"v_dot2c_f32_bf16 v{acc+2*d+1}, v5, v{8+k}")
a("s_nop 2")
for k in range(8):
    a(f"v_permlane32_swap_b32 v{ACC+k}, v{ACC+8+k}")
for k in range(8):
    a(f"v_add_f32 v{ACC+k}, v{ACC+k}, v{ACC+8+k}")
a("s_nop 0")
for k in range(4):
    a(f"v_permlane16_swap_b32 v{ACC+k}, v{ACC+4+k}")
for k in range(4):
    a(f"v_add_f32 v{ACC+k}, v{ACC+k}, v{ACC+4+k}")
stamp(2)
a("s_cmp_eq_u32 s8, 3")
a("s_cbranch_scc1 L_pub1")
a(f"ds_write_b128 v132, v[{ACC}:{ACC+3}]")
if DSCHED == 2:
    for i in range(8): down(i)
a("s_waitcnt lgkmcnt(0)")
a("s_barrier")
if DSCHED == 3:
    for i in range(8): down(i)
if DSCHED == 4:
    for i in range(EARLY, 8): down(i)
a("s_branch L_pub1_done")
a("L_pub1:")
a("s_barrier")
a(f"ds_read_b128 v[{ACC+4}:{ACC+7}], v133")
a(f"ds_read_b128 v[{ACC+8}:{ACC+11}], v133 offset:1024")
a(f"ds_read_b128 v[{ACC+12}:{ACC+15}], v133 offset:2048")
a("s_waitcnt lgkmcnt(1)")
for k in range(4):
    a(f"v_add_f32 v{ACC+4+k}, v{ACC+4+k}, v{ACC+8+k}")
a("s_waitcnt lgkmcnt(0)")
for k in range(4):
    a(f"v_add_f32 v{ACC+k}, v{ACC+k}, v{ACC+12+k}")
for k in range(4):
    a(f"v_add_f32 v{ACC+k}, v{ACC+k}, v{ACC+4+k}")
for k in range(4):
    a(f"v_bfi_b32 v{ACC+k}, s55, v{134+k}, v{ACC+k}")
SF = "".join(" " + f for f in ("sc0", "sc1", "nt") if ("sf_" + f) in opts) or " sc1"
a(f"buffer_store_dwordx4 v[{ACC}:{ACC+3}], v130, s[32:35], 0 offen{SF}")
if "ackst" in opts:
    a("s_waitcnt vmcnt(0)"); stamp(1)
if DSCHED in (2, 3):
    for i in range(8): down(i)
if DSCHED == 4:
    for i in range(EARLY, 8): down(i)
a("L_pub1_done:")
stamp(3)
PG, PU = 140, 144
def poll1():
    a(f"buffer_load_dwordx4 v[{PG}:{PG+3}], v129, s[32:35], 0 offen sc1")
    a(f"buffer_load_dwordx4 v[{PU}:{PU+3}], v129, s[32:35], 0 offen offset:128 sc1")
npre = 0
SLP = opt("slp", 0)
PF = "".join(" " + f for f in ("sc0", "sc1", "nt") if ("pf_" + f) in opts) or " sc1"
def poll1():
    a(f"buffer_load_dwordx4 v[{PG}:{PG+3}], v129, s[32:35], 0 offen{PF}")
    a(f"buffer_load_dwordx4 v[{PU}:{PU+3}], v129, s[32:35], 0 offen offset:128{PF}")
if not POLLLATE:
    if SLP: a(f"s_sleep {SLP}")
    poll1()
    a(f"s_waitcnt vmcnt({2 + npre})")
else:
    a(f"s_waitcnt vmcnt({PN})")
    poll1()
    if PN: a("s_waitcnt vmcnt(2)")
stamp(4)
for k in range(4):
    r0 = D + 8*k; r1 = r0 + 4
    for d in range(4):
        a(f"v_perm_b32 v{G+4*k+d}, v{r1+d}, v{r0+d}, s53")
        a(f"v_perm_b32 v{U+4*k+d}, v{r1+d}, v{r0+d}, s54")
for r in range(ACC, ACC+8):
    a(f"v_mov_b32 v{r}, 0")
a(f"s_mov_b32 s14, {SPIN}")
a("L_poll1:")
a("s_waitcnt vmcnt(0)")
for k in range(4):
    a(f"v_xor_b32 v{PG+k}, v{PG+k}, v{134+k}")
    a(f"v_xor_b32 v{PU+k}, v{PU+k}, v{134+k}")
a(f"v_or3_b32 v2, v{PG}, v{PG+1}, v{PG+2}")
a(f"v_or3_b32 v5, v{PU}, v{PU+1}, v{PU+2}")
a(f"v_or3_b32 v2, v2, v{PG+3}, v{PU+3}")
a(f"v_or_b32 v2, v2, v5")
a("v_and_b32 v2, s55, v2")
a("v_cmp_ne_u32 vcc, 0, v2")
a("s_cbranch_vccz L_poll1_ok")
a("s_sub_u32 s14, s14, 1")
a("s_cbranch_scc1 L_end")
poll1()
a("s_branch L_poll1")
a("L_poll1_ok:")
stamp(5)
if STAMPS: a("s_mov_b32 s62, s14")
for k in range(4):
    a(f"v_add_f32_dpp v{PG+k}, v{PG+k}, v{PG+k} row_half_mirror row_mask:0xf bank_mask:0x5")
for k in range(4):
    a(f"v_add_f32_dpp v{PG+k}, v{PU+k}, v{PU+k} row_half_mirror row_mask:0xf bank_mask:0xa")
for k in range(4):
    a(f"v_add_f32_dpp v{PG+k}, v{PG+k}, v{PG+k} quad_perm:[1,0,3,2] row_mask:0xf bank_mask:0xf")
for k in range(4):
    a(f"v_add_f32_dpp v{PG+k}, v{PG+k}, v{PG+k} quad_perm:[2,3,0,1] row_mask:0xf bank_mask:0xf")
a(f"v_cvt_pk_bf16_f32 v{PG}, v{PG}, v{PG+1}")
a(f"v_cvt_pk_bf16_f32 v{PG+1}, v{PG+2}, v{PG+3}")
a("s_nop 0")
a(f"v_mov_b32_dpp v{PU}, v{PG} row_half_mirror row_mask:0xf bank_mask:0xf")
a(f"v_mov_b32_dpp v{PU+1}, v{PG+1} row_half_mirror row_mask:0xf bank_mask:0xf")
a(f"v_lshlrev_b32 v148, 16, v{PG}")
a(f"v_and_b32 v149, 0xffff0000, v{PG}")
a(f"v_lshlrev_b32 v150, 16, v{PG+1}")
a(f"v_and_b32 v151, 0xffff0000, v{PG+1}")
a(f"v_lshlrev_b32 v152, 16, v{PU}")
a(f"v_and_b32 v153, 0xffff0000, v{PU}")
a(f"v_lshlrev_b32 v154, 16, v{PU+1}")
a(f"v_and_b32 v155, 0xffff0000, v{PU+1}")
a(f"v_pk_mul_f32 v[{PG}:{PG+1}], v[148:149], 0")
a(f"v_pk_mul_f32 v[{PG+2}:{PG+3}], v[150:151], 0")
for k in range(4):
    a(f"v_max_f32 v{148+k}, v{148+k}, v{PG+k}")
a("v_pk_mul_f32 v[148:149], v[148:149], v[152:153]")
a("v_pk_mul_f32 v[150:151], v[150:151], v[154:155]")
a(f"v_cvt_pk_bf16_f32 v{PG}, v148, v149")
a(f"v_cvt_pk_bf16_f32 v{PG+1}, v150, v151")
a("s_nop 1")
for k in range(4):
    src = PG + (k & 1); bc = 0 if k < 2 else 8
    for d in range(4):
        a(f"v_dot2c_f32_bf16_dpp v{ACC+2*d}, v{src}, v{G+4*k+d} row_newbcast:{bc} row_mask:0xf bank_mask:0xf")
        a(f"v_dot2c_f32_bf16_dpp v{ACC+2*d+1}, v{src}, v{U+4*k+d} row_newbcast:{bc} row_mask:0xf bank_mask:0xf")
a("s_nop 2")
for k in range(4):
    a(f"v_permlane32_swap_b32 v{ACC+k}, v{ACC+4+k}")
for k in range(4):
    a(f"v_add_f32 v{ACC+k}, v{ACC+k}, v{ACC+4+k}")
a("s_nop 0")
a(f"v_permlane16_swap_b32 v{ACC}, v{ACC+2}")
a(f"v_permlane16_swap_b32 v{ACC+1}, v{ACC+3}")
a(f"v_add_f32 v{ACC}, v{ACC}, v{ACC+2}")
a(f"v_add_f32 v{ACC+1}, v{ACC+1}, v{ACC+3}")
a("s_mov_b32 s56, 0x55555555")
a("s_mov_b32 s57, 0x55555555")
a(f"v_mov_b32_dpp v{ACC+2}, v{ACC} quad_perm:[1,1,3,3] row_mask:0xf bank_mask:0xf")
a(f"v_mov_b32_dpp v{ACC+3}, v{ACC+1} quad_perm:[1,1,3,3] row_mask:0xf bank_mask:0xf")
for k in range(4):
    a(f"v_bfi_b32 v{ACC+k}, s55, v{134+k}, v{ACC+k}")
a("s_mov_b64 exec, s[56:57]")
def storeB():
    if not NOB: a(f"buffer_store_dwordx4 v[{ACC}:{ACC+3}], v139, s[32:35], 0 offen sc1")
if FAST:
    a(f"buffer_store_dwordx4 v[{ACC}:{ACC+3}], v131, s[32:35], 0 offen")
    stamp(6)
    a("s_cmp_lt_u32 s9, 32")
    a("s_cbranch_scc1 L_cons")
    storeB()
    a("s_branch L_fin")
    a("L_cons:")
else:
    storeB()
    stamp(6)
    a("s_cmp_ge_u32 s9, 32")
    a("s_cbranch_scc1 L_fin")
a("s_mov_b32 s60, -1")
a("s_mov_b32 s61, 0x00ffffff")
a("s_mov_b64 exec, s[60:61]")
a(f"s_mov_b32 s14, {SPIN}")
if not FAST:
    a("v_mov_b32 v128, v138"); a("s_mov_b32 s59, s58")
a("L_poll2:")
a(f"buffer_load_dwordx4 v[{PG}:{PG+3}], v128, s[32:35], 0 offen sc1")
a(f"buffer_load_dwordx4 v[{PU}:{PU+3}], v128, s[32:35], s59 offen sc1")
a("s_sub_u32 s14, s14, 1")
a("s_cbranch_scc1 L_end")
if FAST:
    a(f"s_cmp_lg_u32 s14, {SPIN - NFAST}")
    a("s_cbranch_scc1 L_noswitch")
    a("s_mov_b64 exec, s[56:57]")
    storeB()
    a("s_mov_b64 exec, s[60:61]")
    a("s_mov_b32 s59, s58")
    a("v_mov_b32 v128, v138")
    a("L_noswitch:")
a("s_waitcnt vmcnt(0)")
for k in range(4):
    a(f"v_xor_b32 v{148+k}, v{PG+k}, v{134+k}")
    a(f"v_xor_b32 v{152+k}, v{PU+k}, v{134+k}")
a(f"v_or3_b32 v2, v148, v149, v150")
a(f"v_or3_b32 v5, v152, v153, v154")
a(f"v_or3_b32 v2, v2, v151, v155")
a(f"v_or_b32 v2, v2, v5")
a("v_and_b32 v2, s55, v2")
a("v_cmp_ne_u32 vcc, 0, v2")
a("s_cbranch_vccnz L_poll2")
if STAMPS: a("s_mov_b32 s63, s14")
if FAST:
    a("s_mov_b64 exec, s[56:57]")
    storeB()
    a("s_mov_b64 exec, s[60:61]")
a("v_pk_add_f32 v[148:149], v[148:149], v[152:153]")
a("v_pk_add_f32 v[150:151], v[150:151], v[154:155]")
a("s_not_b64 exec, s[60:61]")
for k in range(4):
    a(f"v_mov_b32 v{148+k}, 0")
a("s_mov_b64 exec, -1")
a("s_nop 1")
a("v_permlane32_swap_b32 v148, v150")
a("v_permlane32_swap_b32 v149, v151")
a("v_add_f32 v148, v148, v150")
a("v_add_f32 v149, v149, v151")
a("s_nop 1")
a("v_permlane16_swap_b32 v148, v149")
a("v_add_f32 v148, v148, v149")
for ror in (8, 4, 2, 1):
    a("s_nop 1")
    a(f"v_add_f32_dpp v148, v148, v148 row_ror:{ror} row_mask:0xf bank_mask:0xf")
a("s_and_b32 s10, s9, 7")
a("s_lshr_b32 s11, s9, 3")
a("s_lshl_b32 s10, s10, 5")
a("s_lshl_b32 s11, s11, 2")
a("s_add_u32 s10, s10, s11")
a("s_add_u32 s10, s10, s7")
a("v_bfe_u32 v2, v0, 4, 1")
a("v_bfe_u32 v5, v0, 5, 1")
a("v_lshlrev_b32 v2, 1, v2")
a("v_lshl_add_u32 v2, v5, 4, v2")
a("v_cvt_pk_bf16_f32 v148, v148, v148")
a("s_mov_b32 s56, 0x00010001")
a("s_mov_b32 s57, 0x00010001")
a("s_mov_b64 exec, s[56:57]")
a("buffer_store_short v148, v2, s[36:39], s10 offen")
a("s_or_b32 s10, s2, s8")
a("s_cbranch_scc1 L_fin")
a("buffer_store_dword v12, v7, s[32:35], 0 offen sc1")
a("L_fin:")
if AMP is not None:
    a("s_memrealtime s[92:93]")
    a("s_waitcnt lgkmcnt(0)")
    a(f"s_sub_u32 s94, {'s92' if AT == 7 else 's88'}, s90")
    a(f"s_mul_i32 s94, s94, {AMP}")
    a("s_add_u32 s94, s94, s92")
    a("L_amp:")
    a("s_memrealtime s[92:93]")
    a("s_waitcnt lgkmcnt(0)")
    a("s_sub_u32 s95, s92, s94")
    a("s_cmp_lt_i32 s95, 0")
    a("s_cbranch_scc1 L_amp")
if STAMPS:
    stamp(7)
    a("s_waitcnt vmcnt(0) lgkmcnt(0)")
    if "cnt" in opts:
        a(f"s_sub_u32 s66, {SPIN}, s62"); a(f"s_sub_u32 s67, {SPIN}, s63")
    if "ack" in opts:
        stamp(1); a("s_waitcnt lgkmcnt(0)")
    a("s_mov_b64 exec, 1")
    a("s_add_u32 s32, s32, 0x8000000"); a("s_addc_u32 s33, s33, 0")
    for k in range(16):
        a(f"v_mov_b32 v{16+k}, s{64+k}")
    a(f"s_lshl_b32 s14, s2, 8")
    a("v_add_u32 v1, s14, v0")
    for k in range(4):
        a(f"buffer_store_dwordx4 v[{16+4*k}:{19+4*k}], v1, s[32:35], 0 offen offset:{16*k}")
a("L_end:")
a("s_endpgm")
out = HDR + f"; @launch grid=(224,1,1) block=(256,1,1) lds=3072\n" + '.amdgcn_target "amdgcn-amd-amdhsa--gfx950"\n'
out += entry(NAME + "_kernel") + a.text() + kd(NAME + "_kernel", 160, 96)
print(out)
```

```python
import sys
from common import *
opts = set(sys.argv[1:])
def opt(name, default):
    for o in opts:
        if o.startswith(name + "="): return int(o[len(name)+1:], 0)
    return default
STAMPS = "stamps" in opts
AMP = opt("amp", None)
EARLY = opt("early", 4)
KE = opt("ke", 1)
XPOS = opt("xpos", 2)
FILL = opt("fill", 1)
A4 = opt("a4", 0)
TAGB = 10
TM = (1 << TAGB) - 1
WB = 7340032
ID_OFF = 0x800
P1_OFF = 0x1000
P2A_OFF = 0x40000
P2B_OFF = 0xC0000
WS_BYTES = 0x140000
OOR = 0x40000000
SPIN = 1 << 18
IDC = 0x9E3779B1
a = Asm()
def c(s): a("; " + s)
AF = opt("af", 0); AT = opt("at", 7)
def stamp(k):
    if STAMPS: a(f"s_memrealtime s[{64+2*k}:{65+2*k}]")
    if AMP is not None and k == AF: a("s_memrealtime s[90:91]")
    if AMP is not None and k == AT and k != 7: a("s_memrealtime s[88:89]")
X, W, D, ACC = 8, 16, 80, 112
LO, HI, P, Q, PG, PU, Z, R = 16, 32, 48, 56, 64, 68, 72, 8
V_PW, V_LANE, V_P1S, V_P1G, V_CA, V_CB, V_PA, V_PB = 120, 121, 122, 123, 124, 125, 126, 127
V_OUT, V_TM, V_TA, V_TB, V_IDS, V_IDG, V_IDE, V_IDL = 128, 129, 130, 131, 132, 133, 134, 135
stamp(0)
a("s_load_dwordx2 s[16:17], s[0:1], 0")
a("s_load_dwordx2 s[20:21], s[0:1], 8")
a("s_load_dwordx2 s[24:25], s[0:1], 16")
a("s_load_dwordx2 s[28:29], s[0:1], 24")
a("s_load_dwordx2 s[36:37], s[0:1], 32")
a("s_load_dwordx2 s[32:33], s[0:1], 48")
a("v_readfirstlane_b32 s8, v0")
a("s_cmp_ge_u32 s2, 224")
a("s_cbranch_scc1 L_end")
c("s3 = x (K slice of phase 1, output column block of phase 2), s4 = m, s8 = wave")
a("s_and_b32 s3, s2, 7")
a("s_lshr_b32 s4, s2, 3")
a("s_lshr_b32 s8, s8, 6")
c("phase 1 unit: waves 0,1 gate chunk m, waves 2,3 up chunk (m+2)%28, half = w&1")
a("s_and_b32 s5, s8, 2")
a("s_add_u32 s15, s4, s5")
a("s_cmp_ge_u32 s15, 28")
a("s_cselect_b32 s5, 28, 0")
a("s_sub_u32 s15, s15, s5")
a("s_and_b32 s6, s8, 1")
a("v_bfe_u32 v2, v0, 3, 3")
a("v_and_b32 v3, 7, v0")
a("v_lshlrev_b32 v3, 4, v3")
a("s_mov_b32 s5, %d" % (16*7168))
a("v_mul_u32_u24 v1, s5, v2")
a("s_mul_i32 s5, s3, %d" % (128*7168))
a("v_add3_u32 v1, v1, v3, s5")
a("s_lshl_b32 s40, s15, 8")
a("s_lshl_b32 s5, s6, 7")
a("s_add_u32 s40, s40, s5")
for i in range(1, 16):
    a(f"s_add_u32 s{40+i}, s40, {i*7168}")
a("s_lshl_b32 s7, s3, 8")
a("v_lshl_add_u32 v6, v2, 5, s7")
for d, n in ((32, WS_BYTES), (16, 2048), (20, WB), (28, WB), (36, 2048)):
    a(f"s_mov_b32 s{d+2}, {n}")
    a(f"s_mov_b32 s{d+3}, 0x00020000")
a("s_cmp_lt_u32 s8, 2")
a("s_waitcnt lgkmcnt(0)")
a("s_cselect_b32 s20, s20, s24")
a("s_cselect_b32 s21, s21, s25")
ST1 = opt("st1", -1)
if ST1 == -1: stamp(1)
outst = []
for i in range(16):
    if i == XPOS:
        a(f"buffer_load_dwordx4 v[{X}:{X+3}], v6, s[16:19], 0 offen")
        a(f"buffer_load_dwordx4 v[{X+4}:{X+7}], v6, s[16:19], 0 offen offset:16")
        outst += ["x", "x"]
        a("s_load_dword s5, s[32:33], 0")
    a(f"buffer_load_dwordx4 v[{W+4*i}:{W+3+4*i}], v1, s[20:23], s{40+i} offen nt")
    outst.append("gu")
c("---- addresses of the later phases (in the shadow of the loads)")
a("v_bfe_u32 v5, v0, 4, 1")
a("v_bfe_u32 v6, v0, 5, 1")
a("v_and_b32 v7, 15, v0")
c("W_down tile: row = 128m + 64(w>>1) + 4(w&1) + 32 b5 + 2 b4 + 8k + e, 256 B at column 128x")
a("v_lshlrev_b32 v4, 12, v5")
a("v_lshl_add_u32 v4, v6, 16, v4")
a("v_lshl_add_u32 v4, v7, 4, v4")
a("s_lshl_b32 s10, s4, 18")
a("s_add_u32 s10, s10, s7")
a("s_lshr_b32 s11, s8, 1")
a("s_lshl_b32 s12, s11, 17")
a("s_add_u32 s10, s10, s12")
a("s_lshl_b32 s12, s6, 13")
a("s_add_u32 s10, s10, s12")
a("v_add_u32 v4, s10, v4")
a("s_movk_i32 s24, 0x4000")
a("s_mov_b32 s25, 0x8000")
a("s_mov_b32 s26, 0xc000")
def down(i):
    so = ["0", "s24", "s25", "s26"][i >> 1]
    off = " offset:2048" if i & 1 else ""
    a(f"buffer_load_dwordx4 v[{D+4*i}:{D+3+4*i}], v4, s[28:31], {so} offen{off} nt")
    outst.append("d")
a("s_mov_b32 s56, 0x05040100")
a("s_mov_b32 s57, 0x07060302")
a(f"s_movk_i32 s58, {TM}")
a(f"v_mov_b32 v{V_TM}, s58")
a("s_mul_i32 s9, s8, 28")
a("s_add_u32 s9, s9, s4")
a(f"v_and_b32 v{V_LANE}, 63, v0")
c("P1 publish address")
a(f"v_lshl_add_u32 v{V_P1S}, v6, 8, v3")
a("s_lshl_b32 s27, s15, 3")
a("s_add_u32 s27, s27, s3")
a("s_lshl_b32 s27, s27, 10")
a("s_lshl_b32 s12, s6, 9")
a("s_add_u32 s27, s27, s12")
a("s_lshl_b32 s12, s11, 7")
a("s_add_u32 s27, s27, s12")
a(f"s_add_u32 s27, s27, {P1_OFF}")
c("P1 gather address")
a("s_lshl_b32 s12, s4, 13")
a("s_lshl_b32 s13, s8, 8")
a("s_add_u32 s12, s12, s13")
a(f"s_add_u32 s12, s12, {P1_OFF}")
a(f"v_lshl_add_u32 v{V_P1G}, v2, 10, v3")
a(f"v_add_u32 v{V_P1G}, s12, v{V_P1G}")
c("P2 consumer addresses (A: same-L2 copy, B: write-through copy)")
a("s_lshl_b32 s10, s3, 5")
a("s_add_u32 s10, s10, s9")
a("s_mul_i32 s10, s10, 1792")
a(f"s_add_u32 s10, s10, {P2A_OFF}")
a("s_cmp_lt_u32 s9, 32")
a(f"s_cselect_b32 s10, s10, {OOR}")
a(f"v_lshl_add_u32 v{V_CA}, v{V_LANE}, 4, s10")
a(f"v_lshl_add_u32 v{V_PW}, v{V_LANE}, 7, s10")
a("s_mul_i32 s13, s3, 57344")
a("s_lshl_b32 s12, s9, 4")
a("s_add_u32 s12, s12, s13")
a(f"s_add_u32 s12, s12, {P2B_OFF}")
a(f"v_lshl_add_u32 v{V_CB}, v{V_LANE}, 9, s12")
c("P2 producer addresses")
a("v_bfe_u32 v2, v0, 4, 2")
a("v_lshrrev_b32 v3, 1, v7")
a("v_lshl_add_u32 v2, v2, 3, v3")
a("v_and_b32 v7, 1, v0")
a("s_lshl_b32 s12, s4, 2")
a("s_add_u32 s12, s12, s8")
a("s_lshl_b32 s10, s12, 4")
a("s_add_u32 s10, s10, s13")
a(f"s_add_u32 s10, s10, {P2A_OFF}")
a(f"v_mul_u32_u24 v{V_PA}, 1792, v2")
a(f"v_lshl_add_u32 v{V_PA}, v7, 3, v{V_PA}")
a(f"v_add_u32 v{V_PA}, s10, v{V_PA}")
a("s_lshl_b32 s10, s12, 9")
a("s_add_u32 s10, s10, s13")
a(f"s_add_u32 s10, s10, {P2B_OFF}")
a(f"v_lshlrev_b32 v{V_PB}, 4, v2")
a(f"v_lshl_add_u32 v{V_PB}, v7, 3, v{V_PB}")
a(f"v_add_u32 v{V_PB}, s10, v{V_PB}")
c("output address")
a("s_and_b32 s59, s9, 7")
a("s_lshr_b32 s12, s9, 3")
a("s_lshl_b32 s59, s59, 5")
a("s_lshl_b32 s12, s12, 2")
a("s_add_u32 s59, s59, s12")
a("s_add_u32 s59, s59, s7")
a(f"v_lshlrev_b32 v{V_OUT}, 1, v5")
a(f"v_lshl_add_u32 v{V_OUT}, v6, 4, v{V_OUT}")
c("tag selectors of the P2 stores")
a(f"v_mad_u32_u24 v{V_TB}, v7, {TAGB}, {TAGB}")
a(f"v_mul_u32_u24 v{V_TA}, s58, v7")
c("die id words")
a("s_getreg_b32 s14, hwreg(HW_REG_XCC_ID, 0, 4)")
a("s_lshl_b32 s10, s3, 7")
a(f"s_add_u32 s10, s10, {ID_OFF}")
a(f"v_min_u32 v{V_IDE}, 27, v{V_LANE}")
a(f"v_lshl_add_u32 v{V_IDG}, v{V_IDE}, 2, s10")
a("s_lshl_b32 s12, s4, 2")
a("s_add_u32 s10, s10, s12")
a("s_cmp_eq_u32 s8, 0")
a(f"s_cselect_b32 s10, s10, {OOR}")
a(f"v_mov_b32 v{V_IDS}, s10")
a(f"s_mov_b32 s12, {IDC}")
a(f"v_mul_lo_u32 v{V_IDE}, v{V_IDE}, s12")
a("s_mul_i32 s13, s4, s12")
for r in range(ACC, ACC+8):
    a(f"v_mov_b32 v{r}, 0")
def wait_idx(idx): a(f"s_waitcnt vmcnt({len(outst) - 1 - idx})")
def nth(kind, count): return [i for i, k in enumerate(outst) if k == kind][count-1]
c("---- phase 1: partial gate / up sums over 128 rows")
for k in range(8):
    wait_idx(max(nth("gu", 2*k+2), nth("x", 2)))
    if k == ST1: stamp(1)
    if k == 0:
        a("s_waitcnt lgkmcnt(0)")
        a("s_mov_b64 exec, 0x3fff")
        a(f"buffer_load_dword v{V_IDL}, v{V_PW}, s[32:35], 0 offen sc1"); outst.append("p")
        a("s_add_u32 s5, s5, 1")
        a("s_lshl_b32 s10, s5, 4")
        a("s_or_b32 s14, s14, s10")
        a("s_add_u32 s13, s13, s14")
        a("s_mov_b64 exec, 1")
        a(f"v_mov_b32 v{V_PW}, s13")
        a(f"buffer_store_dword v{V_PW}, v{V_IDS}, s[32:35], 0 offen sc1"); outst.append("p")
        a("s_mov_b64 exec, -1")
        a(f"s_and_b32 s60, s5, {TM}")
        a(f"s_bfe_u32 s61, s5, {TAGB | (TAGB << 16)}")
        a(f"s_xor_b32 s62, s60, {TM}")
        a(f"s_bfe_u32 s63, s5, {2*TAGB | (TAGB << 16)}")
        a(f"v_lshrrev_b32 v{V_TB}, v{V_TB}, s5")
        a(f"v_xor_b32 v{V_TA}, s5, v{V_TA}")
        a(f"v_add_u32 v{V_IDE}, s14, v{V_IDE}")
    if k == KE:
        for i in range(EARLY): down(i)
    r0 = W + 8*k; r1 = r0 + 4
    for d in range(4):
        a(f"v_perm_b32 v2, v{r1+d}, v{r0+d}, s56")
        a(f"v_perm_b32 v3, v{r1+d}, v{r0+d}, s57")
        a(f"v_dot2c_f32_bf16 v{ACC+2*d}, v2, v{X+k}")
        a(f"v_dot2c_f32_bf16 v{ACC+2*d+1}, v3, v{X+k}")
for k in range(4):
    a(f"v_permlane32_swap_b32 v{ACC+k}, v{ACC+4+k}")
for k in range(4):
    a(f"v_add_f32 v{ACC+k}, v{ACC+k}, v{ACC+4+k}")
a("s_nop 0")
a(f"v_permlane16_swap_b32 v{ACC}, v{ACC+2}")
a(f"v_permlane16_swap_b32 v{ACC+1}, v{ACC+3}")
a(f"v_add_f32 v{ACC}, v{ACC}, v{ACC+2}")
a(f"v_add_f32 v{ACC+1}, v{ACC+1}, v{ACC+3}")
a("s_nop 0")
a(f"v_add_f32_dpp v{Z}, v{ACC}, v{ACC} row_ror:8 row_mask:0xf bank_mask:0xf")
a(f"v_add_f32_dpp v{Z+2}, v{ACC}, v{ACC} row_ror:8 row_mask:0xf bank_mask:0xf")
a(f"v_add_f32_dpp v{Z+1}, v{ACC+1}, v{ACC+1} row_ror:8 row_mask:0xf bank_mask:0xf")
a(f"v_add_f32_dpp v{Z+3}, v{ACC+1}, v{ACC+1} row_ror:8 row_mask:0xf bank_mask:0xf")
a(f"v_permlane16_swap_b32 v{Z}, v{Z+2}")
a("s_nop 0")
a(f"v_permlane16_swap_b32 v{Z+1}, v{Z+3}")
a("s_mov_b32 exec_lo, 0xff")
a("s_mov_b32 exec_hi, 0xff")
for k in (0, 2, 1, 3):
    a(f"v_bfi_b32 v{Z+k}, v{V_TM}, s{60+k}, v{Z+k}")
a(f"buffer_store_dwordx4 v[{Z}:{Z+3}], v{V_P1S}, s[32:35], s27 offen sc1")
a("s_mov_b64 exec, -1")
stamp(2)
a("s_barrier")
for i in range(EARLY, 8): down(i)
for r in range(ACC, ACC+8):
    a(f"v_mov_b32 v{r}, 0")
for k in range(4):
    a(f"v_mov_b32 v{R+k}, 0")
a(f"s_mov_b32 s15, {SPIN}")
def poll1():
    a(f"buffer_load_dwordx4 v[{PG}:{PG+3}], v{V_P1G}, s[32:35], 0 offen sc1")
    a(f"buffer_load_dwordx4 v[{PU}:{PU+3}], v{V_P1G}, s[32:35], 0 offen offset:128 sc1")
a(f"s_waitcnt vmcnt({8 - EARLY})")
a("s_barrier")
stamp(3)
if "idlast" in opts:
    poll1()
    a(f"buffer_load_dword v{V_IDL}, v{V_IDG}, s[32:35], 0 offen sc1")
else:
    a(f"buffer_load_dword v{V_IDL}, v{V_IDG}, s[32:35], 0 offen sc1")
    poll1()
perms = []
for k in range(4):
    r0 = D + 8*k; r1 = r0 + 4
    for d in range(4):
        perms.append(f"v_perm_b32 v{LO+4*k+d}, v{r1+d}, v{r0+d}, s56")
        perms.append(f"v_perm_b32 v{HI+4*k+d}, v{r1+d}, v{r0+d}, s57")
ne = 8 * (EARLY // 2)
nf = 8 if FILL else 0
ne = min(ne, 32 - nf)
for p in perms[:ne]: a(p)
a("s_waitcnt vmcnt(3)")
stamp(4)
for p in perms[ne:32-nf]: a(p)
fill = perms[32-nf:]
def gap(n):
    if FILL:
        for _ in range(n): a(fill.pop(0))
    else: a(f"s_nop {n-1}")
c("---- gather the 8 partial sums of 32 gate / up columns")
a("L_poll1:")
a("s_waitcnt vmcnt(0)")
for k in range(4):
    a(f"v_xor_b32 v{PG+k}, s{60+k}, v{PG+k}")
    a(f"v_xor_b32 v{PU+k}, s{60+k}, v{PU+k}")
a(f"v_or3_b32 v2, v{PG}, v{PU}, v{PG+1}")
a(f"v_or3_b32 v3, v{PU+1}, v{PG+2}, v{PU+2}")
a(f"v_or3_b32 v2, v2, v{PG+3}, v{PU+3}")
a("v_bitop3_b32 v2, v2, v3, s58 bitop3:0xa8")
a("v_cmp_ne_u32 vcc, 0, v2")
for k in range(4):
    a(f"v_permlane32_swap_b32 v{PG+k}, v{PU+k}")
for k in range(4):
    a(f"v_add_f32 v{PG+k}, v{PG+k}, v{PU+k}")
a("s_cbranch_vccnz L_poll1_again")
stamp(5)
if STAMPS: a("s_mov_b32 s86, s15")
gap(1)
a(f"v_permlane16_swap_b32 v{PG}, v{PG+2}")
a(f"v_permlane16_swap_b32 v{PG+1}, v{PG+3}")
a(f"v_add_f32 v{PG}, v{PG}, v{PG+2}")
a(f"v_add_f32 v{PG+1}, v{PG+1}, v{PG+3}")
gap(1)
a(f"v_add_f32_dpp v{PG}, v{PG}, v{PG} row_ror:8 row_mask:0xf bank_mask:0xf")
a(f"v_add_f32_dpp v{PG+1}, v{PG+1}, v{PG+1} row_ror:8 row_mask:0xf bank_mask:0xf")
a(f"v_cvt_pk_bf16_f32 v{PG}, v{PG}, v{PG+1}")
gap(2)
a(f"v_mov_b32_dpp v{PU}, v{PG} row_ror:4 row_mask:0xf bank_mask:0xf")
gap(2)
a(f"v_permlane32_swap_b32 v{PG}, v{PU}")
c("h = bf16(bf16(g) * (g > 0) * bf16(u))")
a(f"v_lshlrev_b32 v{PG+2}, 16, v{PG}")
a(f"v_and_b32 v{PG+3}, 0xffff0000, v{PG}")
a(f"v_lshlrev_b32 v{PU+2}, 16, v{PU}")
a(f"v_pk_mul_f32 v[{PG}:{PG+1}], v[{PG+2}:{PG+3}], 0")
a(f"v_and_b32 v{PU+3}, 0xffff0000, v{PU}")
a(f"v_max_f32 v{PG+2}, v{PG+2}, v{PG}")
a(f"v_max_f32 v{PG+3}, v{PG+3}, v{PG+1}")
a(f"v_pk_mul_f32 v[{PG+2}:{PG+3}], v[{PG+2}:{PG+3}], v[{PU+2}:{PU+3}]")
a(f"v_cvt_pk_bf16_f32 v{PG}, v{PG+2}, v{PG+3}")
gap(2)
c("---- phase 2: 32 rows of the W_down tile")
for k in range(4):
    for d in range(4):
        a(f"v_dot2c_f32_bf16_dpp v{ACC+2*d}, v{PG}, v{LO+4*k+d} row_newbcast:{k} row_mask:0xf bank_mask:0xf")
        a(f"v_dot2c_f32_bf16_dpp v{ACC+2*d+1}, v{PG}, v{HI+4*k+d} row_newbcast:{k} row_mask:0xf bank_mask:0xf")
for k in range(4):
    a(f"v_permlane32_swap_b32 v{ACC+k}, v{ACC+4+k}")
for k in range(4):
    a(f"v_add_f32 v{ACC+k}, v{ACC+k}, v{ACC+4+k}")
a(f"v_cmp_ne_u32 vcc, v{V_IDL}, v{V_IDE}")
a(f"v_permlane16_swap_b32 v{ACC}, v{ACC+2}")
a(f"v_permlane16_swap_b32 v{ACC+1}, v{ACC+3}")
a(f"v_add_f32 v{ACC}, v{ACC}, v{ACC+2}")
a(f"v_add_f32 v{ACC+1}, v{ACC+1}, v{ACC+3}")
if A4:
    a("s_mov_b32 s10, 0x55555555")
    a(f"v_mov_b32_dpp v{ACC+2}, v{ACC} quad_perm:[1,1,3,3] row_mask:0xf bank_mask:0xf")
    a(f"v_mov_b32_dpp v{ACC+3}, v{ACC+1} quad_perm:[1,1,3,3] row_mask:0xf bank_mask:0xf")
    a("s_mov_b32 exec_lo, s10")
    a("s_mov_b32 exec_hi, s10")
    for k in range(4):
        a(f"v_bfi_b32 v{ACC+k}, v{V_TM}, s{60+k}, v{ACC+k}")
    st = lambda v, fl: a(f"buffer_store_dwordx4 v[{ACC}:{ACC+3}], v{v}, s[32:35], 0 offen{fl}")
else:
    a(f"v_bfi_b32 v{ACC}, s58, v{V_TA}, v{ACC}")
    a(f"v_bfi_b32 v{ACC+1}, s58, v{V_TB}, v{ACC+1}")
    st = lambda v, fl: a(f"buffer_store_dwordx2 v[{ACC}:{ACC+1}], v{v}, s[32:35], 0 offen{fl}")
st(V_PA, "")
stamp(6)
a("s_cbranch_vccnz L_needb")
a("s_cmp_ge_u32 s9, 32")
a("s_cbranch_scc1 L_fin")
a("s_movk_i32 s12, 896")
if A4: a("s_mov_b32 exec_lo, -1")
a("s_mov_b32 exec_hi, 0x00ffffff")
a(f"v_mov_b32 v{V_CB}, v{V_CA}")
a("L_cons:")
c("---- final reduction of 112 partial sums of 4 output columns")
a("s_movk_i32 s11, 896")
a(f"s_mov_b32 s15, {SPIN}")
def ld2(r, v, s):
    a(f"buffer_load_dwordx4 v[{r}:{r+3}], v{v}, s[32:35], 0 offen sc1")
    a(f"buffer_load_dwordx4 v[{r+4}:{r+7}], v{v}, s[32:35], s{s} offen sc1")
def chk(r):
    for k in range(4):
        a(f"v_xor_b32 v{R+k}, s{60+k}, v{r+k}")
        a(f"v_xor_b32 v{R+4+k}, s{60+k}, v{r+4+k}")
    a(f"v_or3_b32 v2, v{R}, v{R+4}, v{R+1}")
    a(f"v_or3_b32 v3, v{R+5}, v{R+2}, v{R+6}")
    a(f"v_or3_b32 v2, v2, v{R+3}, v{R+7}")
    a("v_bitop3_b32 v2, v2, v3, s58 bitop3:0xa8")
    a("v_cmp_ne_u32 vcc, 0, v2")
    a(f"v_pk_add_f32 v[{R}:{R+1}], v[{R}:{R+1}], v[{R+4}:{R+5}]")
    a(f"v_pk_add_f32 v[{R+2}:{R+3}], v[{R+2}:{R+3}], v[{R+6}:{R+7}]")
ld2(P, V_CA, 11)
a("L_poll2:")
ld2(Q, V_CB, 12)
a("s_waitcnt vmcnt(2)")
chk(P)
a("s_cbranch_vccz L_poll2_ok")
ld2(P, V_CA, 11)
a("s_sub_u32 s15, s15, 1")
a("s_cbranch_scc1 L_end")
a("s_waitcnt vmcnt(2)")
chk(Q)
a("s_cbranch_vccnz L_poll2")
a("L_poll2_ok:")
if STAMPS: a("s_mov_b32 s87, s15")
a("s_mov_b32 exec_hi, -1")
a(f"v_permlane32_swap_b32 v{R}, v{R+2}")
a(f"v_permlane32_swap_b32 v{R+1}, v{R+3}")
a(f"v_add_f32 v{R}, v{R}, v{R+2}")
a(f"v_add_f32 v{R+1}, v{R+1}, v{R+3}")
a("s_nop 1")
a(f"v_permlane16_swap_b32 v{R}, v{R+1}")
a(f"v_add_f32 v{R}, v{R}, v{R+1}")
for ror in (8, 4, 2, 1):
    a("s_nop 1")
    a(f"v_add_f32_dpp v{R}, v{R}, v{R} row_ror:{ror} row_mask:0xf bank_mask:0xf")
a("s_mov_b32 exec_lo, 0x00010001")
a("s_mov_b32 exec_hi, 0x00010001")
a(f"v_cvt_pk_bf16_f32 v{R}, v{R}, v{R}")
a(f"buffer_store_short v{R}, v{V_OUT}, s[36:39], s59 offen")
a("s_or_b32 s10, s2, s8")
a("s_cbranch_scc1 L_fin")
a("s_mov_b64 exec, 1")
a("v_mov_b32 v2, s5")
a("buffer_store_dword v2, off, s[32:35], 0")
a("L_fin:")
if AMP is not None:
    a("s_memrealtime s[92:93]")
    a("s_waitcnt lgkmcnt(0)")
    a(f"s_sub_u32 s94, {'s92' if AT == 7 else 's88'}, s90")
    a(f"s_mul_i32 s94, s94, {AMP}")
    a("s_add_u32 s94, s94, s92")
    a("L_amp:")
    a("s_memrealtime s[92:93]")
    a("s_waitcnt lgkmcnt(0)")
    a("s_sub_u32 s95, s92, s94")
    a("s_cmp_lt_i32 s95, 0")
    a("s_cbranch_scc1 L_amp")
if STAMPS:
    stamp(7)
    a("s_waitcnt vmcnt(0) lgkmcnt(0)")
    if "cnt" in opts:
        a(f"s_sub_u32 s66, {SPIN}, s86"); a(f"s_sub_u32 s67, {SPIN}, s87")
    a("s_mov_b64 exec, 1")
    a("s_add_u32 s32, s32, 0x8000000"); a("s_addc_u32 s33, s33, 0")
    for k in range(16):
        a(f"v_mov_b32 v{16+k}, s{64+k}")
    a(f"s_lshl_b32 s14, s2, 8")
    a("v_add_u32 v1, s14, v0")
    for k in range(4):
        a(f"buffer_store_dwordx4 v[{16+4*k}:{19+4*k}], v1, s[32:35], 0 offen offset:{16*k}")
a("L_end:")
a("s_endpgm")
a("L_poll1_again:")
a("s_sub_u32 s15, s15, 1")
a("s_cbranch_scc1 L_end")
poll1()
a("s_branch L_poll1")
c("some workgroup of this column block may sit on another die: write-through copy, poll both copies")
a("L_needb:")
st(V_PB, " sc1")
a("s_cmp_ge_u32 s9, 32")
a("s_cbranch_scc1 L_fin")
a(f"s_mov_b32 s12, {56*512}")
if A4: a("s_mov_b32 exec_lo, -1")
a("s_mov_b32 exec_hi, 0x00ffffff")
a("s_branch L_cons")
out = HDR + f"; @launch grid=(224,1,1) block=(256,1,1) lds=0\n" + '.amdgcn_target "amdgcn-amd-amdhsa--gfx950"\n'
out += entry(NAME + "_kernel") + a.text() + kd(NAME + "_kernel", 136, 96 if (STAMPS or AMP is not None) else 72)
print(out)
```

```python
import sys
from common import *
opts = set(sys.argv[1:])
def opt(name, default):
    for o in opts:
        if o.startswith(name + "="): return int(o[len(name)+1:], 0)
    return default
STAMPS = "stamps" in opts
AMP = opt("amp", None)
EARLY = opt("early", 4)
KE = opt("ke", 1)
XPOS = opt("xpos", 2)
FILL = opt("fill", 1)
A4 = opt("a4", 0)
TAGB = 10
TM = (1 << TAGB) - 1
WB = 7340032
ID_OFF = 0x800
P1_OFF = 0x1000
P2A_OFF = 0x40000
P2B_OFF = 0xC0000
WS_BYTES = 0x140000
OOR = 0x40000000
SPIN = 1 << 18
IDC = 0x9E3779B1
a = Asm()
def c(s): a("; " + s)
AF = opt("af", 0); AT = opt("at", 7)
def stamp(k):
    if STAMPS: a(f"s_memrealtime s[{64+2*k}:{65+2*k}]")
    if AMP is not None and k == AF: a("s_memrealtime s[90:91]")
    if AMP is not None and k == AT and k != 7: a("s_memrealtime s[88:89]")
X, W, D, ACC = 8, 16, 80, 112
LO, HI, P, Q, PG, PU, Z, R = 16, 32, 48, 56, 64, 68, 72, 8
V_PW, V_LANE, V_P1S, V_P1G, V_CA, V_CB, V_PA, V_PB = 120, 121, 122, 123, 124, 125, 126, 127
V_OUT, V_TM, V_TA, V_TB, V_IDS, V_IDG, V_IDE, V_IDL = 128, 129, 130, 131, 132, 133, 134, 135
stamp(0)
a("s_load_dwordx2 s[16:17], s[0:1], 0")
a("s_load_dwordx2 s[20:21], s[0:1], 8")
a("s_load_dwordx2 s[24:25], s[0:1], 16")
a("s_load_dwordx2 s[28:29], s[0:1], 24")
a("s_load_dwordx2 s[36:37], s[0:1], 32")
a("s_load_dwordx2 s[32:33], s[0:1], 48")
a("v_readfirstlane_b32 s8, v0")
a("s_cmp_ge_u32 s2, 224")
a("s_cbranch_scc1 L_end")
c("s3 = x (K slice of phase 1, output column block of phase 2), s4 = m, s8 = wave")
a("s_and_b32 s3, s2, 7")
a("s_lshr_b32 s4, s2, 3")
a("s_lshr_b32 s8, s8, 6")
c("phase 1 unit: waves 0,1 gate chunk m, waves 2,3 up chunk (m+2)%28, half = w&1")
a("s_and_b32 s5, s8, 2")
a("s_add_u32 s15, s4, s5")
a("s_cmp_ge_u32 s15, 28")
a("s_cselect_b32 s5, 28, 0")
a("s_sub_u32 s15, s15, s5")
a("s_and_b32 s6, s8, 1")
a("v_bfe_u32 v2, v0, 3, 3")
a("v_and_b32 v3, 7, v0")
a("v_lshlrev_b32 v3, 4, v3")
a("s_mov_b32 s5, %d" % (16*7168))
a("v_mul_u32_u24 v1, s5, v2")
a("s_mul_i32 s5, s3, %d" % (128*7168))
a("v_add3_u32 v1, v1, v3, s5")
a("s_lshl_b32 s40, s15, 8")
a("s_lshl_b32 s5, s6, 7")
a("s_add_u32 s40, s40, s5")
for i in range(1, 16):
    a(f"s_add_u32 s{40+i}, s40, {i*7168}")
a("s_lshl_b32 s7, s3, 8")
a("v_lshl_add_u32 v6, v2, 5, s7")
for d, n in ((32, WS_BYTES), (16, 2048), (20, WB), (28, WB), (36, 2048)):
    a(f"s_mov_b32 s{d+2}, {n}")
    a(f"s_mov_b32 s{d+3}, 0x00020000")
a("s_cmp_lt_u32 s8, 2")
a("s_waitcnt lgkmcnt(0)")
a("s_cselect_b32 s20, s20, s24")
a("s_cselect_b32 s21, s21, s25")
ST1 = opt("st1", -1)
if ST1 == -1: stamp(1)
outst = []
for i in range(16):
    if i == XPOS:
        a(f"buffer_load_dwordx4 v[{X}:{X+3}], v6, s[16:19], 0 offen")
        a(f"buffer_load_dwordx4 v[{X+4}:{X+7}], v6, s[16:19], 0 offen offset:16")
        outst += ["x", "x"]
        a("s_load_dword s5, s[32:33], 0")
    a(f"buffer_load_dwordx4 v[{W+4*i}:{W+3+4*i}], v1, s[20:23], s{40+i} offen nt")
    outst.append("gu")
c("---- addresses of the later phases (in the shadow of the loads)")
a("v_bfe_u32 v5, v0, 4, 1")
a("v_bfe_u32 v6, v0, 5, 1")
a("v_and_b32 v7, 15, v0")
c("W_down tile: row = 128m + 64(w>>1) + 4(w&1) + 32 b5 + 2 b4 + 8k + e, 256 B at column 128x")
a("v_lshlrev_b32 v4, 12, v5")
a("v_lshl_add_u32 v4, v6, 16, v4")
a("v_lshl_add_u32 v4, v7, 4, v4")
a("s_lshl_b32 s10, s4, 18")
a("s_add_u32 s10, s10, s7")
a("s_lshr_b32 s11, s8, 1")
a("s_lshl_b32 s12, s11, 17")
a("s_add_u32 s10, s10, s12")
a("s_lshl_b32 s12, s6, 13")
a("s_add_u32 s10, s10, s12")
a("v_add_u32 v4, s10, v4")
a("s_movk_i32 s24, 0x4000")
a("s_mov_b32 s25, 0x8000")
a("s_mov_b32 s26, 0xc000")
def down(i):
    so = ["0", "s24", "s25", "s26"][i >> 1]
    off = " offset:2048" if i & 1 else ""
    a(f"buffer_load_dwordx4 v[{D+4*i}:{D+3+4*i}], v4, s[28:31], {so} offen{off} nt")
    outst.append("d")
a("s_mov_b32 s56, 0x05040100")
a("s_mov_b32 s57, 0x07060302")
a(f"s_movk_i32 s58, {TM}")
a(f"v_mov_b32 v{V_TM}, s58")
a("s_mul_i32 s9, s8, 28")
a("s_add_u32 s9, s9, s4")
a(f"v_and_b32 v{V_LANE}, 63, v0")
c("P1 publish address")
a(f"v_lshl_add_u32 v{V_P1S}, v6, 8, v3")
a("s_lshl_b32 s27, s15, 3")
a("s_add_u32 s27, s27, s3")
a("s_lshl_b32 s27, s27, 10")
a("s_lshl_b32 s12, s6, 9")
a("s_add_u32 s27, s27, s12")
a("s_lshl_b32 s12, s11, 7")
a("s_add_u32 s27, s27, s12")
a(f"s_add_u32 s27, s27, {P1_OFF}")
c("P1 gather address")
a("s_lshl_b32 s12, s4, 13")
a("s_lshl_b32 s13, s8, 8")
a("s_add_u32 s12, s12, s13")
a(f"s_add_u32 s12, s12, {P1_OFF}")
a(f"v_lshl_add_u32 v{V_P1G}, v2, 10, v3")
a(f"v_add_u32 v{V_P1G}, s12, v{V_P1G}")
c("P2 consumer addresses (A: same-L2 copy, B: write-through copy)")
a("s_lshl_b32 s10, s3, 5")
a("s_add_u32 s10, s10, s9")
a("s_mul_i32 s10, s10, 1792")
a(f"s_add_u32 s10, s10, {P2A_OFF}")
a("s_cmp_lt_u32 s9, 32")
a(f"s_cselect_b32 s10, s10, {OOR}")
a(f"v_lshl_add_u32 v{V_CA}, v{V_LANE}, 4, s10")
a(f"v_lshl_add_u32 v{V_PW}, v{V_LANE}, 7, s10")
a("s_mul_i32 s13, s3, 57344")
a("s_lshl_b32 s12, s9, 4")
a("s_add_u32 s12, s12, s13")
a(f"s_add_u32 s12, s12, {P2B_OFF}")
a(f"v_lshl_add_u32 v{V_CB}, v{V_LANE}, 9, s12")
c("P2 producer addresses")
a("v_bfe_u32 v2, v0, 4, 2")
a("v_lshrrev_b32 v3, 1, v7")
a("v_lshl_add_u32 v2, v2, 3, v3")
a("v_and_b32 v7, 1, v0")
a("s_lshl_b32 s12, s4, 2")
a("s_add_u32 s12, s12, s8")
a("s_lshl_b32 s10, s12, 4")
a("s_add_u32 s10, s10, s13")
a(f"s_add_u32 s10, s10, {P2A_OFF}")
a(f"v_mul_u32_u24 v{V_PA}, 1792, v2")
a(f"v_lshl_add_u32 v{V_PA}, v7, 3, v{V_PA}")
a(f"v_add_u32 v{V_PA}, s10, v{V_PA}")
a("s_lshl_b32 s10, s12, 9")
a("s_add_u32 s10, s10, s13")
a(f"s_add_u32 s10, s10, {P2B_OFF}")
a(f"v_lshlrev_b32 v{V_PB}, 4, v2")
a(f"v_lshl_add_u32 v{V_PB}, v7, 3, v{V_PB}")
a(f"v_add_u32 v{V_PB}, s10, v{V_PB}")
c("output address")
a("s_and_b32 s59, s9, 7")
a("s_lshr_b32 s12, s9, 3")
a("s_lshl_b32 s59, s59, 5")
a("s_lshl_b32 s12, s12, 2")
a("s_add_u32 s59, s59, s12")
a("s_add_u32 s59, s59, s7")
a(f"v_lshlrev_b32 v{V_OUT}, 1, v5")
a(f"v_lshl_add_u32 v{V_OUT}, v6, 4, v{V_OUT}")
c("tag selectors of the P2 stores")
a(f"v_mad_u32_u24 v{V_TB}, v7, {TAGB}, {TAGB}")
a(f"v_mul_u32_u24 v{V_TA}, s58, v7")
c("die id words")
a("s_getreg_b32 s14, hwreg(HW_REG_XCC_ID, 0, 4)")
a("s_lshl_b32 s10, s3, 7")
a(f"s_add_u32 s10, s10, {ID_OFF}")
a(f"v_min_u32 v{V_IDE}, 27, v{V_LANE}")
a(f"v_lshl_add_u32 v{V_IDG}, v{V_IDE}, 2, s10")
a("s_lshl_b32 s12, s4, 2")
a("s_add_u32 s10, s10, s12")
a("s_cmp_eq_u32 s8, 0")
a(f"s_cselect_b32 s10, s10, {OOR}")
a(f"v_mov_b32 v{V_IDS}, s10")
a(f"s_mov_b32 s12, {IDC}")
a(f"v_mul_lo_u32 v{V_IDE}, v{V_IDE}, s12")
a("s_mul_i32 s13, s4, s12")
for r in range(ACC, ACC+8):
    a(f"v_mov_b32 v{r}, 0")
def wait_idx(idx): a(f"s_waitcnt vmcnt({len(outst) - 1 - idx})")
def nth(kind, count): return [i for i, k in enumerate(outst) if k == kind][count-1]
c("---- phase 1: partial gate / up sums over 128 rows")
for k in range(8):
    wait_idx(max(nth("gu", 2*k+2), nth("x", 2)))
    if k == ST1: stamp(1)
    if k == 0:
        a("s_waitcnt lgkmcnt(0)")
        a("s_mov_b64 exec, 0x3fff")
        a(f"buffer_load_dword v{V_IDL}, v{V_PW}, s[32:35], 0 offen sc1"); outst.append("p")
        a("s_add_u32 s5, s5, 1")
        a("s_lshl_b32 s10, s5, 4")
        a("s_or_b32 s14, s14, s10")
        a("s_add_u32 s13, s13, s14")
        a("s_mov_b64 exec, 1")
        a(f"v_mov_b32 v{V_PW}, s13")
        a(f"buffer_store_dword v{V_PW}, v{V_IDS}, s[32:35], 0 offen sc1"); outst.append("p")
        a("s_mov_b64 exec, -1")
        a(f"s_and_b32 s60, s5, {TM}")
        a(f"s_bfe_u32 s61, s5, {TAGB | (TAGB << 16)}")
        a(f"s_xor_b32 s62, s60, {TM}")
        a(f"s_bfe_u32 s63, s5, {2*TAGB | (TAGB << 16)}")
        a(f"v_lshrrev_b32 v{V_TB}, v{V_TB}, s5")
        a(f"v_xor_b32 v{V_TA}, s5, v{V_TA}")
        a(f"v_add_u32 v{V_IDE}, s14, v{V_IDE}")
    if k == KE:
        for i in range(EARLY): down(i)
    r0 = W + 8*k; r1 = r0 + 4
    for d in range(4):
        a(f"v_perm_b32 v2, v{r1+d}, v{r0+d}, s56")
        a(f"v_perm_b32 v3, v{r1+d}, v{r0+d}, s57")
        a(f"v_dot2c_f32_bf16 v{ACC+2*d}, v2, v{X+k}")
        a(f"v_dot2c_f32_bf16 v{ACC+2*d+1}, v3, v{X+k}")
for k in range(4):
    a(f"v_permlane32_swap_b32 v{ACC+k}, v{ACC+4+k}")
for k in range(4):
    a(f"v_add_f32 v{ACC+k}, v{ACC+k}, v{ACC+4+k}")
a("s_nop 0")
a(f"v_permlane16_swap_b32 v{ACC}, v{ACC+2}")
a(f"v_permlane16_swap_b32 v{ACC+1}, v{ACC+3}")
a(f"v_add_f32 v{ACC}, v{ACC}, v{ACC+2}")
a(f"v_add_f32 v{ACC+1}, v{ACC+1}, v{ACC+3}")
a("s_nop 0")
a(f"v_add_f32_dpp v{Z}, v{ACC}, v{ACC} row_ror:8 row_mask:0xf bank_mask:0xf")
a(f"v_add_f32_dpp v{Z+2}, v{ACC}, v{ACC} row_ror:8 row_mask:0xf bank_mask:0xf")
a(f"v_add_f32_dpp v{Z+1}, v{ACC+1}, v{ACC+1} row_ror:8 row_mask:0xf bank_mask:0xf")
a(f"v_add_f32_dpp v{Z+3}, v{ACC+1}, v{ACC+1} row_ror:8 row_mask:0xf bank_mask:0xf")
a(f"v_permlane16_swap_b32 v{Z}, v{Z+2}")
a("s_nop 0")
a(f"v_permlane16_swap_b32 v{Z+1}, v{Z+3}")
a("s_mov_b32 exec_lo, 0xff")
a("s_mov_b32 exec_hi, 0xff")
for k in (0, 2, 1, 3):
    a(f"v_bfi_b32 v{Z+k}, v{V_TM}, s{60+k}, v{Z+k}")
a(f"buffer_store_dwordx4 v[{Z}:{Z+3}], v{V_P1S}, s[32:35], s27 offen sc1")
a("s_mov_b64 exec, -1")
stamp(2)
a("s_barrier")
for i in range(EARLY, 8): down(i)
for r in range(ACC, ACC+8):
    a(f"v_mov_b32 v{r}, 0")
for k in range(4):
    a(f"v_mov_b32 v{R+k}, 0")
a(f"s_mov_b32 s15, {SPIN}")
def poll1():
    a(f"buffer_load_dwordx4 v[{PG}:{PG+3}], v{V_P1G}, s[32:35], 0 offen sc1")
    a(f"buffer_load_dwordx4 v[{PU}:{PU+3}], v{V_P1G}, s[32:35], 0 offen offset:128 sc1")
a(f"s_waitcnt vmcnt({8 - EARLY})")
a("s_barrier")
stamp(3)
if "idlast" in opts:
    poll1()
    a(f"buffer_load_dword v{V_IDL}, v{V_IDG}, s[32:35], 0 offen sc1")
else:
    a(f"buffer_load_dword v{V_IDL}, v{V_IDG}, s[32:35], 0 offen sc1")
    poll1()
perms = []
for k in range(4):
    r0 = D + 8*k; r1 = r0 + 4
    for d in range(4):
        perms.append(f"v_perm_b32 v{LO+4*k+d}, v{r1+d}, v{r0+d}, s56")
        perms.append(f"v_perm_b32 v{HI+4*k+d}, v{r1+d}, v{r0+d}, s57")
ne = 8 * (EARLY // 2)
nf = 8 if FILL else 0
ne = min(ne, 32 - nf)
for p in perms[:ne]: a(p)
a("s_waitcnt vmcnt(3)")
stamp(4)
for p in perms[ne:32-nf]: a(p)
fill = perms[32-nf:]
def gap(n):
    if FILL:
        for _ in range(n): a(fill.pop(0))
    else: a(f"s_nop {n-1}")
c("---- gather the 8 partial sums of 32 gate / up columns")
a("L_poll1:")
a("s_waitcnt vmcnt(0)")
for k in range(4):
    a(f"v_xor_b32 v{PG+k}, s{60+k}, v{PG+k}")
    a(f"v_xor_b32 v{PU+k}, s{60+k}, v{PU+k}")
a(f"v_or3_b32 v2, v{PG}, v{PU}, v{PG+1}")
a(f"v_or3_b32 v3, v{PU+1}, v{PG+2}, v{PU+2}")
a(f"v_or3_b32 v2, v2, v{PG+3}, v{PU+3}")
a("v_bitop3_b32 v2, v2, v3, s58 bitop3:0xa8")
a("v_cmp_ne_u32 vcc, 0, v2")
for k in range(4):
    a(f"v_permlane32_swap_b32 v{PG+k}, v{PU+k}")
for k in range(4):
    a(f"v_add_f32 v{PG+k}, v{PG+k}, v{PU+k}")
a("s_cbranch_vccnz L_poll1_again")
stamp(5)
if STAMPS: a("s_mov_b32 s86, s15")
gap(1)
a(f"v_permlane16_swap_b32 v{PG}, v{PG+2}")
a(f"v_permlane16_swap_b32 v{PG+1}, v{PG+3}")
a(f"v_add_f32 v{PG}, v{PG}, v{PG+2}")
a(f"v_add_f32 v{PG+1}, v{PG+1}, v{PG+3}")
gap(1)
a(f"v_add_f32_dpp v{PG}, v{PG}, v{PG} row_ror:8 row_mask:0xf bank_mask:0xf")
a(f"v_add_f32_dpp v{PG+1}, v{PG+1}, v{PG+1} row_ror:8 row_mask:0xf bank_mask:0xf")
a(f"v_cvt_pk_bf16_f32 v{PG}, v{PG}, v{PG+1}")
gap(2)
a(f"v_mov_b32_dpp v{PU}, v{PG} row_ror:4 row_mask:0xf bank_mask:0xf")
gap(2)
a(f"v_permlane32_swap_b32 v{PG}, v{PU}")
c("h = bf16(bf16(g) * (g > 0) * bf16(u))")
a(f"v_lshlrev_b32 v{PG+2}, 16, v{PG}")
a(f"v_and_b32 v{PG+3}, 0xffff0000, v{PG}")
a(f"v_lshlrev_b32 v{PU+2}, 16, v{PU}")
a(f"v_pk_mul_f32 v[{PG}:{PG+1}], v[{PG+2}:{PG+3}], 0")
a(f"v_and_b32 v{PU+3}, 0xffff0000, v{PU}")
a(f"v_max_f32 v{PG+2}, v{PG+2}, v{PG}")
a(f"v_max_f32 v{PG+3}, v{PG+3}, v{PG+1}")
a(f"v_pk_mul_f32 v[{PG+2}:{PG+3}], v[{PG+2}:{PG+3}], v[{PU+2}:{PU+3}]")
a(f"v_cvt_pk_bf16_f32 v{PG}, v{PG+2}, v{PG+3}")
gap(2)
c("---- phase 2: 32 rows of the W_down tile")
for k in range(4):
    for d in range(4):
        a(f"v_dot2c_f32_bf16_dpp v{ACC+2*d}, v{PG}, v{LO+4*k+d} row_newbcast:{k} row_mask:0xf bank_mask:0xf")
        a(f"v_dot2c_f32_bf16_dpp v{ACC+2*d+1}, v{PG}, v{HI+4*k+d} row_newbcast:{k} row_mask:0xf bank_mask:0xf")
for k in range(4):
    a(f"v_permlane32_swap_b32 v{ACC+k}, v{ACC+4+k}")
for k in range(4):
    a(f"v_add_f32 v{ACC+k}, v{ACC+k}, v{ACC+4+k}")
a(f"v_cmp_ne_u32 vcc, v{V_IDL}, v{V_IDE}")
a(f"v_permlane16_swap_b32 v{ACC}, v{ACC+2}")
a(f"v_permlane16_swap_b32 v{ACC+1}, v{ACC+3}")
a(f"v_add_f32 v{ACC}, v{ACC}, v{ACC+2}")
a(f"v_add_f32 v{ACC+1}, v{ACC+1}, v{ACC+3}")
if A4:
    a("s_mov_b32 s10, 0x55555555")
    a(f"v_mov_b32_dpp v{ACC+2}, v{ACC} quad_perm:[1,1,3,3] row_mask:0xf bank_mask:0xf")
    a(f"v_mov_b32_dpp v{ACC+3}, v{ACC+1} quad_perm:[1,1,3,3] row_mask:0xf bank_mask:0xf")
    a("s_mov_b32 exec_lo, s10")
    a("s_mov_b32 exec_hi, s10")
    for k in range(4):
        a(f"v_bfi_b32 v{ACC+k}, v{V_TM}, s{60+k}, v{ACC+k}")
    st = lambda v, fl: a(f"buffer_store_dwordx4 v[{ACC}:{ACC+3}], v{v}, s[32:35], 0 offen{fl}")
else:
    a(f"v_bfi_b32 v{ACC}, s58, v{V_TA}, v{ACC}")
    a(f"v_bfi_b32 v{ACC+1}, s58, v{V_TB}, v{ACC+1}")
    st = lambda v, fl: a(f"buffer_store_dwordx2 v[{ACC}:{ACC+1}], v{v}, s[32:35], 0 offen{fl}")
st(V_PA, "")
stamp(6)
a("s_cbranch_vccnz L_needb")
a("s_cmp_ge_u32 s9, 32")
a("s_cbranch_scc1 L_fin")
a("s_movk_i32 s12, 896")
if A4: a("s_mov_b32 exec_lo, -1")
a("s_mov_b32 exec_hi, 0x00ffffff")
a(f"v_mov_b32 v{V_CB}, v{V_CA}")
a("L_cons:")
c("---- final reduction of 112 partial sums of 4 output columns")
a("s_movk_i32 s11, 896")
a(f"s_mov_b32 s15, {SPIN}")
def ld2(r, v, s):
    a(f"buffer_load_dwordx4 v[{r}:{r+3}], v{v}, s[32:35], 0 offen sc1")
    a(f"buffer_load_dwordx4 v[{r+4}:{r+7}], v{v}, s[32:35], s{s} offen sc1")
def chk(r):
    for k in range(4):
        a(f"v_xor_b32 v{R+k}, s{60+k}, v{r+k}")
        a(f"v_xor_b32 v{R+4+k}, s{60+k}, v{r+4+k}")
    a(f"v_or3_b32 v2, v{R}, v{R+4}, v{R+1}")
    a(f"v_or3_b32 v3, v{R+5}, v{R+2}, v{R+6}")
    a(f"v_or3_b32 v2, v2, v{R+3}, v{R+7}")
    a("v_bitop3_b32 v2, v2, v3, s58 bitop3:0xa8")
    a("v_cmp_ne_u32 vcc, 0, v2")
    a(f"v_pk_add_f32 v[{R}:{R+1}], v[{R}:{R+1}], v[{R+4}:{R+5}]")
    a(f"v_pk_add_f32 v[{R+2}:{R+3}], v[{R+2}:{R+3}], v[{R+6}:{R+7}]")
ld2(P, V_CA, 11)
a("L_poll2:")
ld2(Q, V_CB, 12)
a("s_waitcnt vmcnt(2)")
chk(P)
a("s_cbranch_vccz L_poll2_ok")
ld2(P, V_CA, 11)
a("s_sub_u32 s15, s15, 1")
a("s_cbranch_scc1 L_end")
a("s_waitcnt vmcnt(2)")
chk(Q)
a("s_cbranch_vccnz L_poll2")
a("L_poll2_ok:")
if STAMPS: a("s_mov_b32 s87, s15")
a("s_mov_b32 exec_hi, -1")
a(f"v_permlane32_swap_b32 v{R}, v{R+2}")
a(f"v_permlane32_swap_b32 v{R+1}, v{R+3}")
a(f"v_add_f32 v{R}, v{R}, v{R+2}")
a(f"v_add_f32 v{R+1}, v{R+1}, v{R+3}")
a("s_nop 1")
a(f"v_permlane16_swap_b32 v{R}, v{R+1}")
a(f"v_add_f32 v{R}, v{R}, v{R+1}")
for ror in (8, 4, 2, 1):
    a("s_nop 1")
    a(f"v_add_f32_dpp v{R}, v{R}, v{R} row_ror:{ror} row_mask:0xf bank_mask:0xf")
a("s_mov_b32 exec_lo, 0x00010001")
a("s_mov_b32 exec_hi, 0x00010001")
a(f"v_cvt_pk_bf16_f32 v{R}, v{R}, v{R}")
a(f"buffer_store_short v{R}, v{V_OUT}, s[36:39], s59 offen")
a("s_or_b32 s10, s2, s8")
a("s_cbranch_scc1 L_fin")
a("s_mov_b64 exec, 1")
a("v_mov_b32 v2, s5")
a("buffer_store_dword v2, off, s[32:35], 0")
a("L_fin:")
XD = opt("xd", 0)
if XD:
    a("s_mov_b64 exec, -1")
    a("s_mov_b32 s34, 0x8000000")
    a("s_lshl_b32 s10, s2, 2")
    a("s_add_u32 s10, s10, s8")
    a(f"s_mul_i32 s10, s10, {XD*1024}")
    a("s_add_u32 s10, s10, 0x1000000")
    a(f"v_lshl_add_u32 v2, v{V_LANE}, 4, s10")
    fl = " sc1" if "xdsc1" in opts else (" nt" if "xdnt" in opts else "")
    for i in range(XD):
        a(f"buffer_store_dwordx4 v[16:19], v2, s[32:35], 0 offen{fl}")
        a("v_add_u32 v2, 1024, v2")
if AMP is not None:
    a("s_memrealtime s[92:93]")
    a("s_waitcnt lgkmcnt(0)")
    a(f"s_sub_u32 s94, {'s92' if AT == 7 else 's88'}, s90")
    a(f"s_mul_i32 s94, s94, {AMP}")
    a("s_add_u32 s94, s94, s92")
    a("L_amp:")
    a("s_memrealtime s[92:93]")
    a("s_waitcnt lgkmcnt(0)")
    a("s_sub_u32 s95, s92, s94")
    a("s_cmp_lt_i32 s95, 0")
    a("s_cbranch_scc1 L_amp")
if STAMPS:
    stamp(7)
    a("s_waitcnt vmcnt(0) lgkmcnt(0)")
    if "cnt" in opts:
        a(f"s_sub_u32 s66, {SPIN}, s86"); a(f"s_sub_u32 s67, {SPIN}, s87")
    a("s_mov_b64 exec, 1")
    a("s_add_u32 s32, s32, 0x8000000"); a("s_addc_u32 s33, s33, 0")
    for k in range(16):
        a(f"v_mov_b32 v{16+k}, s{64+k}")
    a(f"s_lshl_b32 s14, s2, 8")
    a("v_add_u32 v1, s14, v0")
    for k in range(4):
        a(f"buffer_store_dwordx4 v[{16+4*k}:{19+4*k}], v1, s[32:35], 0 offen offset:{16*k}")
a("L_end:")
a("s_endpgm")
a("L_poll1_again:")
a("s_sub_u32 s15, s15, 1")
a("s_cbranch_scc1 L_end")
poll1()
a("s_branch L_poll1")
c("some workgroup of this column block may sit on another die: write-through copy, poll both copies")
a("L_needb:")
st(V_PB, " sc1")
a("s_cmp_ge_u32 s9, 32")
a("s_cbranch_scc1 L_fin")
a(f"s_mov_b32 s12, {56*512}")
if A4: a("s_mov_b32 exec_lo, -1")
a("s_mov_b32 exec_hi, 0x00ffffff")
a("s_branch L_cons")
out = HDR + f"; @launch grid=(224,1,1) block=(256,1,1) lds=0\n" + '.amdgcn_target "amdgcn-amd-amdhsa--gfx950"\n'
out += entry(NAME + "_kernel") + a.text() + kd(NAME + "_kernel", 136, 96 if (STAMPS or AMP is not None) else 72)
print(out)
```

```python
import sys
from common import *
opts = set(sys.argv[1:])
def opt(name, default):
    for o in opts:
        if o.startswith(name + "="): return int(o[len(name)+1:], 0)
    return default
STAMPS = "stamps" in opts
AMP = opt("amp", None)
EARLY = opt("early", 4)
KE = opt("ke", 1)
XPOS = opt("xpos", 2)
FILL = opt("fill", 1)
A4 = opt("a4", 0)
TAGB = 10
TM = (1 << TAGB) - 1
WB = 7340032
ID_OFF = 0x800
P1_OFF = 0x1000
P2A_OFF = 0x40000
P2B_OFF = 0xC0000
WS_BYTES = 0x140000
OOR = 0x40000000
SPIN = 1 << 18
IDC = 0x9E3779B1
a = Asm()
def c(s): a("; " + s)
AF = opt("af", 0); AT = opt("at", 7)
def stamp(k):
    if STAMPS: a(f"s_memrealtime s[{64+2*k}:{65+2*k}]")
    if AMP is not None and k == AF: a("s_memrealtime s[90:91]")
    if AMP is not None and k == AT and k != 7: a("s_memrealtime s[88:89]")
X, W, D, ACC = 8, 16, 80, 112
LO, HI, P, Q, PG, PU, Z, R = 16, 32, 48, 56, 64, 68, 72, 8
V_PW, V_LANE, V_P1S, V_P1G, V_CA, V_CB, V_PA, V_PB = 120, 121, 122, 123, 124, 125, 126, 127
V_OUT, V_TM, V_TA, V_TB, V_IDS, V_IDG, V_IDE, V_IDL = 128, 129, 130, 131, 132, 133, 134, 135
stamp(0)
a("s_load_dwordx2 s[16:17], s[0:1], 0")
a("s_load_dwordx2 s[20:21], s[0:1], 8")
a("s_load_dwordx2 s[24:25], s[0:1], 16")
a("s_load_dwordx2 s[28:29], s[0:1], 24")
a("s_load_dwordx2 s[36:37], s[0:1], 32")
a("s_load_dwordx2 s[32:33], s[0:1], 48")
a("v_readfirstlane_b32 s8, v0")
a("s_cmp_ge_u32 s2, 224")
a("s_cbranch_scc1 L_end")
c("s3 = x (K slice of phase 1, output column block of phase 2), s4 = m, s8 = wave")
a("s_and_b32 s3, s2, 7")
a("s_lshr_b32 s4, s2, 3")
a("s_lshr_b32 s8, s8, 6")
c("phase 1 unit: waves 0,1 gate chunk m, waves 2,3 up chunk (m+2)%28, half = w&1")
a("s_and_b32 s5, s8, 2")
a("s_add_u32 s15, s4, s5")
a("s_cmp_ge_u32 s15, 28")
a("s_cselect_b32 s5, 28, 0")
a("s_sub_u32 s15, s15, s5")
a("s_and_b32 s6, s8, 1")
a("v_bfe_u32 v2, v0, 3, 3")
a("v_and_b32 v3, 7, v0")
a("v_lshlrev_b32 v3, 4, v3")
a("s_mov_b32 s5, %d" % (16*7168))
a("v_mul_u32_u24 v1, s5, v2")
a("s_mul_i32 s5, s3, %d" % (128*7168))
a("v_add3_u32 v1, v1, v3, s5")
a("s_lshl_b32 s40, s15, 8")
a("s_lshl_b32 s5, s6, 7")
a("s_add_u32 s40, s40, s5")
for i in range(1, 16):
    a(f"s_add_u32 s{40+i}, s40, {i*7168}")
a("s_lshl_b32 s7, s3, 8")
a("v_lshl_add_u32 v6, v2, 5, s7")
for d, n in ((32, WS_BYTES), (16, 2048), (20, WB), (28, WB), (36, 2048)):
    a(f"s_mov_b32 s{d+2}, {n}")
    a(f"s_mov_b32 s{d+3}, 0x00020000")
a("s_cmp_lt_u32 s8, 2")
a("s_waitcnt lgkmcnt(0)")
a("s_cselect_b32 s20, s20, s24")
a("s_cselect_b32 s21, s21, s25")
ST1 = opt("st1", -1)
if ST1 == -1: stamp(1)
outst = []
for i in range(16):
    if i == XPOS:
        a(f"buffer_load_dwordx4 v[{X}:{X+3}], v6, s[16:19], 0 offen")
        a(f"buffer_load_dwordx4 v[{X+4}:{X+7}], v6, s[16:19], 0 offen offset:16")
        outst += ["x", "x"]
        a("s_load_dword s5, s[32:33], 0")
    a(f"buffer_load_dwordx4 v[{W+4*i}:{W+3+4*i}], v1, s[20:23], s{40+i} offen nt")
    outst.append("gu")
c("---- addresses of the later phases (in the shadow of the loads)")
a("v_bfe_u32 v5, v0, 4, 1")
a("v_bfe_u32 v6, v0, 5, 1")
a("v_and_b32 v7, 15, v0")
c("W_down tile: row = 128m + 64(w>>1) + 4(w&1) + 32 b5 + 2 b4 + 8k + e, 256 B at column 128x")
a("v_lshlrev_b32 v4, 12, v5")
a("v_lshl_add_u32 v4, v6, 16, v4")
a("v_lshl_add_u32 v4, v7, 4, v4")
a("s_lshl_b32 s10, s4, 18")
a("s_add_u32 s10, s10, s7")
a("s_lshr_b32 s11, s8, 1")
a("s_lshl_b32 s12, s11, 17")
a("s_add_u32 s10, s10, s12")
a("s_lshl_b32 s12, s6, 13")
a("s_add_u32 s10, s10, s12")
a("v_add_u32 v4, s10, v4")
a("s_movk_i32 s24, 0x4000")
a("s_mov_b32 s25, 0x8000")
a("s_mov_b32 s26, 0xc000")
def down(i):
    so = ["0", "s24", "s25", "s26"][i >> 1]
    off = " offset:2048" if i & 1 else ""
    a(f"buffer_load_dwordx4 v[{D+4*i}:{D+3+4*i}], v4, s[28:31], {so} offen{off} nt")
    outst.append("d")
a("s_mov_b32 s56, 0x05040100")
a("s_mov_b32 s57, 0x07060302")
a(f"s_movk_i32 s58, {TM}")
a(f"v_mov_b32 v{V_TM}, s58")
a("s_mul_i32 s9, s8, 28")
a("s_add_u32 s9, s9, s4")
a(f"v_and_b32 v{V_LANE}, 63, v0")
c("P1 publish address")
a(f"v_lshl_add_u32 v{V_P1S}, v6, 8, v3")
a("s_lshl_b32 s27, s15, 3")
a("s_add_u32 s27, s27, s3")
a("s_lshl_b32 s27, s27, 10")
a("s_lshl_b32 s12, s6, 9")
a("s_add_u32 s27, s27, s12")
a("s_lshl_b32 s12, s11, 7")
a("s_add_u32 s27, s27, s12")
a(f"s_add_u32 s27, s27, {P1_OFF}")
c("P1 gather address")
a("s_lshl_b32 s12, s4, 13")
a("s_lshl_b32 s13, s8, 8")
a("s_add_u32 s12, s12, s13")
a(f"s_add_u32 s12, s12, {P1_OFF}")
a(f"v_lshl_add_u32 v{V_P1G}, v2, 10, v3")
a(f"v_add_u32 v{V_P1G}, s12, v{V_P1G}")
c("P2 consumer addresses (A: same-L2 copy, B: write-through copy)")
a("s_lshl_b32 s10, s3, 5")
a("s_add_u32 s10, s10, s9")
a("s_mul_i32 s10, s10, 1792")
a(f"s_add_u32 s10, s10, {P2A_OFF}")
a("s_cmp_lt_u32 s9, 32")
a(f"s_cselect_b32 s10, s10, {OOR}")
a(f"v_lshl_add_u32 v{V_CA}, v{V_LANE}, 4, s10")
a(f"v_lshl_add_u32 v{V_PW}, v{V_LANE}, 7, s10")
a("s_mul_i32 s13, s3, 57344")
a("s_lshl_b32 s12, s9, 4")
a("s_add_u32 s12, s12, s13")
a(f"s_add_u32 s12, s12, {P2B_OFF}")
a(f"v_lshl_add_u32 v{V_CB}, v{V_LANE}, 9, s12")
c("P2 producer addresses")
a("v_bfe_u32 v2, v0, 4, 2")
a("v_lshrrev_b32 v3, 1, v7")
a("v_lshl_add_u32 v2, v2, 3, v3")
a("v_and_b32 v7, 1, v0")
a("s_lshl_b32 s12, s4, 2")
a("s_add_u32 s12, s12, s8")
a("s_lshl_b32 s10, s12, 4")
a("s_add_u32 s10, s10, s13")
a(f"s_add_u32 s10, s10, {P2A_OFF}")
a(f"v_mul_u32_u24 v{V_PA}, 1792, v2")
a(f"v_lshl_add_u32 v{V_PA}, v7, 3, v{V_PA}")
a(f"v_add_u32 v{V_PA}, s10, v{V_PA}")
a("s_lshl_b32 s10, s12, 9")
a("s_add_u32 s10, s10, s13")
a(f"s_add_u32 s10, s10, {P2B_OFF}")
a(f"v_lshlrev_b32 v{V_PB}, 4, v2")
a(f"v_lshl_add_u32 v{V_PB}, v7, 3, v{V_PB}")
a(f"v_add_u32 v{V_PB}, s10, v{V_PB}")
c("output address")
a("s_and_b32 s59, s9, 7")
a("s_lshr_b32 s12, s9, 3")
a("s_lshl_b32 s59, s59, 5")
a("s_lshl_b32 s12, s12, 2")
a("s_add_u32 s59, s59, s12")
a("s_add_u32 s59, s59, s7")
a(f"v_lshlrev_b32 v{V_OUT}, 1, v5")
a(f"v_lshl_add_u32 v{V_OUT}, v6, 4, v{V_OUT}")
c("tag selectors of the P2 stores")
a(f"v_mad_u32_u24 v{V_TB}, v7, {TAGB}, {TAGB}")
a(f"v_mul_u32_u24 v{V_TA}, s58, v7")
c("die id words")
a("s_getreg_b32 s14, hwreg(HW_REG_XCC_ID, 0, 4)")
a("s_lshl_b32 s10, s3, 7")
a(f"s_add_u32 s10, s10, {ID_OFF}")
a(f"v_min_u32 v{V_IDE}, 27, v{V_LANE}")
a(f"v_lshl_add_u32 v{V_IDG}, v{V_IDE}, 2, s10")
a("s_lshl_b32 s12, s4, 2")
a("s_add_u32 s10, s10, s12")
a("s_cmp_eq_u32 s8, 0")
a(f"s_cselect_b32 s10, s10, {OOR}")
a(f"v_mov_b32 v{V_IDS}, s10")
a(f"s_mov_b32 s12, {IDC}")
a(f"v_mul_lo_u32 v{V_IDE}, v{V_IDE}, s12")
a("s_mul_i32 s13, s4, s12")
for r in range(ACC, ACC+8):
    a(f"v_mov_b32 v{r}, 0")
def wait_idx(idx): a(f"s_waitcnt vmcnt({len(outst) - 1 - idx})")
def nth(kind, count): return [i for i, k in enumerate(outst) if k == kind][count-1]
c("---- phase 1: partial gate / up sums over 128 rows")
for k in range(8):
    wait_idx(max(nth("gu", 2*k+2), nth("x", 2)))
    if k == ST1: stamp(1)
    if k == 0:
        a("s_waitcnt lgkmcnt(0)")
        a("s_mov_b64 exec, 0x3fff")
        a(f"buffer_load_dword v{V_IDL}, v{V_PW}, s[32:35], 0 offen sc1"); outst.append("p")
        a("s_add_u32 s5, s5, 1")
        a("s_lshl_b32 s10, s5, 4")
        a("s_or_b32 s14, s14, s10")
        a("s_add_u32 s13, s13, s14")
        a("s_mov_b64 exec, 1")
        a(f"v_mov_b32 v{V_PW}, s13")
        a(f"buffer_store_dword v{V_PW}, v{V_IDS}, s[32:35], 0 offen sc1"); outst.append("p")
        a("s_mov_b64 exec, -1")
        a(f"s_and_b32 s60, s5, {TM}")
        a(f"s_bfe_u32 s61, s5, {TAGB | (TAGB << 16)}")
        a(f"s_xor_b32 s62, s60, {TM}")
        a(f"s_bfe_u32 s63, s5, {2*TAGB | (TAGB << 16)}")
        a(f"v_lshrrev_b32 v{V_TB}, v{V_TB}, s5")
        a(f"v_xor_b32 v{V_TA}, s5, v{V_TA}")
        a(f"v_add_u32 v{V_IDE}, s14, v{V_IDE}")
    if k == KE:
        for i in range(EARLY): down(i)
    r0 = W + 8*k; r1 = r0 + 4
    for d in range(4):
        a(f"v_perm_b32 v2, v{r1+d}, v{r0+d}, s56")
        a(f"v_perm_b32 v3, v{r1+d}, v{r0+d}, s57")
        a(f"v_dot2c_f32_bf16 v{ACC+2*d}, v2, v{X+k}")
        a(f"v_dot2c_f32_bf16 v{ACC+2*d+1}, v3, v{X+k}")
for k in range(4):
    a(f"v_permlane32_swap_b32 v{ACC+k}, v{ACC+4+k}")
for k in range(4):
    a(f"v_add_f32 v{ACC+k}, v{ACC+k}, v{ACC+4+k}")
a("s_nop 0")
a(f"v_permlane16_swap_b32 v{ACC}, v{ACC+2}")
a(f"v_permlane16_swap_b32 v{ACC+1}, v{ACC+3}")
a(f"v_add_f32 v{ACC}, v{ACC}, v{ACC+2}")
a(f"v_add_f32 v{ACC+1}, v{ACC+1}, v{ACC+3}")
a("s_nop 0")
a(f"v_add_f32_dpp v{Z}, v{ACC}, v{ACC} row_ror:8 row_mask:0xf bank_mask:0xf")
a(f"v_add_f32_dpp v{Z+2}, v{ACC}, v{ACC} row_ror:8 row_mask:0xf bank_mask:0xf")
a(f"v_add_f32_dpp v{Z+1}, v{ACC+1}, v{ACC+1} row_ror:8 row_mask:0xf bank_mask:0xf")
a(f"v_add_f32_dpp v{Z+3}, v{ACC+1}, v{ACC+1} row_ror:8 row_mask:0xf bank_mask:0xf")
a(f"v_permlane16_swap_b32 v{Z}, v{Z+2}")
a("s_nop 0")
a(f"v_permlane16_swap_b32 v{Z+1}, v{Z+3}")
a("s_mov_b32 exec_lo, 0xff")
a("s_mov_b32 exec_hi, 0xff")
for k in (0, 2, 1, 3):
    a(f"v_bfi_b32 v{Z+k}, v{V_TM}, s{60+k}, v{Z+k}")
a(f"buffer_store_dwordx4 v[{Z}:{Z+3}], v{V_P1S}, s[32:35], s27 offen sc1")
a("s_mov_b64 exec, -1")
stamp(2)
a("s_barrier")
for i in range(EARLY, 8): down(i)
for r in range(ACC, ACC+8):
    a(f"v_mov_b32 v{r}, 0")
for k in range(4):
    a(f"v_mov_b32 v{R+k}, 0")
a(f"s_mov_b32 s15, {SPIN}")
def poll1():
    a(f"buffer_load_dwordx4 v[{PG}:{PG+3}], v{V_P1G}, s[32:35], 0 offen sc1")
    a(f"buffer_load_dwordx4 v[{PU}:{PU+3}], v{V_P1G}, s[32:35], 0 offen offset:128 sc1")
a(f"s_waitcnt vmcnt({8 - EARLY})")
a("s_barrier")
stamp(3)
if "idlast" in opts:
    poll1()
    a(f"buffer_load_dword v{V_IDL}, v{V_IDG}, s[32:35], 0 offen sc1")
else:
    a(f"buffer_load_dword v{V_IDL}, v{V_IDG}, s[32:35], 0 offen sc1")
    poll1()
perms = []
for k in range(4):
    r0 = D + 8*k; r1 = r0 + 4
    for d in range(4):
        perms.append(f"v_perm_b32 v{LO+4*k+d}, v{r1+d}, v{r0+d}, s56")
        perms.append(f"v_perm_b32 v{HI+4*k+d}, v{r1+d}, v{r0+d}, s57")
ne = 8 * (EARLY // 2)
nf = 8 if FILL else 0
ne = min(ne, 32 - nf)
for p in perms[:ne]: a(p)
a("s_waitcnt vmcnt(3)")
stamp(4)
for p in perms[ne:32-nf]: a(p)
fill = perms[32-nf:]
def gap(n):
    if FILL:
        for _ in range(n): a(fill.pop(0))
    else: a(f"s_nop {n-1}")
c("---- gather the 8 partial sums of 32 gate / up columns")
a("L_poll1:")
a("s_waitcnt vmcnt(0)")
for k in range(4):
    a(f"v_xor_b32 v{PG+k}, s{60+k}, v{PG+k}")
    a(f"v_xor_b32 v{PU+k}, s{60+k}, v{PU+k}")
a(f"v_or3_b32 v2, v{PG}, v{PU}, v{PG+1}")
a(f"v_or3_b32 v3, v{PU+1}, v{PG+2}, v{PU+2}")
a(f"v_or3_b32 v2, v2, v{PG+3}, v{PU+3}")
a("v_bitop3_b32 v2, v2, v3, s58 bitop3:0xa8")
a("v_cmp_ne_u32 vcc, 0, v2")
for k in range(4):
    a(f"v_permlane32_swap_b32 v{PG+k}, v{PU+k}")
for k in range(4):
    a(f"v_add_f32 v{PG+k}, v{PG+k}, v{PU+k}")
a("s_cbranch_vccnz L_poll1_again")
stamp(5)
if STAMPS: a("s_mov_b32 s86, s15")
gap(1)
a(f"v_permlane16_swap_b32 v{PG}, v{PG+2}")
a(f"v_permlane16_swap_b32 v{PG+1}, v{PG+3}")
a(f"v_add_f32 v{PG}, v{PG}, v{PG+2}")
a(f"v_add_f32 v{PG+1}, v{PG+1}, v{PG+3}")
gap(1)
a(f"v_add_f32_dpp v{PG}, v{PG}, v{PG} row_ror:8 row_mask:0xf bank_mask:0xf")
a(f"v_add_f32_dpp v{PG+1}, v{PG+1}, v{PG+1} row_ror:8 row_mask:0xf bank_mask:0xf")
a(f"v_cvt_pk_bf16_f32 v{PG}, v{PG}, v{PG+1}")
gap(2)
a(f"v_mov_b32_dpp v{PU}, v{PG} row_ror:4 row_mask:0xf bank_mask:0xf")
gap(2)
a(f"v_permlane32_swap_b32 v{PG}, v{PU}")
c("h = bf16(bf16(g) * (g > 0) * bf16(u))")
a(f"v_lshlrev_b32 v{PG+2}, 16, v{PG}")
a(f"v_and_b32 v{PG+3}, 0xffff0000, v{PG}")
a(f"v_lshlrev_b32 v{PU+2}, 16, v{PU}")
a(f"v_pk_mul_f32 v[{PG}:{PG+1}], v[{PG+2}:{PG+3}], 0")
a(f"v_and_b32 v{PU+3}, 0xffff0000, v{PU}")
a(f"v_max_f32 v{PG+2}, v{PG+2}, v{PG}")
a(f"v_max_f32 v{PG+3}, v{PG+3}, v{PG+1}")
a(f"v_pk_mul_f32 v[{PG+2}:{PG+3}], v[{PG+2}:{PG+3}], v[{PU+2}:{PU+3}]")
a(f"v_cvt_pk_bf16_f32 v{PG}, v{PG+2}, v{PG+3}")
gap(2)
c("---- phase 2: 32 rows of the W_down tile")
for k in range(4):
    for d in range(4):
        a(f"v_dot2c_f32_bf16_dpp v{ACC+2*d}, v{PG}, v{LO+4*k+d} row_newbcast:{k} row_mask:0xf bank_mask:0xf")
        a(f"v_dot2c_f32_bf16_dpp v{ACC+2*d+1}, v{PG}, v{HI+4*k+d} row_newbcast:{k} row_mask:0xf bank_mask:0xf")
for k in range(4):
    a(f"v_permlane32_swap_b32 v{ACC+k}, v{ACC+4+k}")
for k in range(4):
    a(f"v_add_f32 v{ACC+k}, v{ACC+k}, v{ACC+4+k}")
a(f"v_cmp_ne_u32 vcc, v{V_IDL}, v{V_IDE}")
a(f"v_permlane16_swap_b32 v{ACC}, v{ACC+2}")
a(f"v_permlane16_swap_b32 v{ACC+1}, v{ACC+3}")
a(f"v_add_f32 v{ACC}, v{ACC}, v{ACC+2}")
a(f"v_add_f32 v{ACC+1}, v{ACC+1}, v{ACC+3}")
if A4:
    a("s_mov_b32 s10, 0x55555555")
    a(f"v_mov_b32_dpp v{ACC+2}, v{ACC} quad_perm:[1,1,3,3] row_mask:0xf bank_mask:0xf")
    a(f"v_mov_b32_dpp v{ACC+3}, v{ACC+1} quad_perm:[1,1,3,3] row_mask:0xf bank_mask:0xf")
    a("s_mov_b32 exec_lo, s10")
    a("s_mov_b32 exec_hi, s10")
    for k in range(4):
        a(f"v_bfi_b32 v{ACC+k}, v{V_TM}, s{60+k}, v{ACC+k}")
    st = lambda v, fl: a(f"buffer_store_dwordx4 v[{ACC}:{ACC+3}], v{v}, s[32:35], 0 offen{fl}")
else:
    a(f"v_bfi_b32 v{ACC}, s58, v{V_TA}, v{ACC}")
    a(f"v_bfi_b32 v{ACC+1}, s58, v{V_TB}, v{ACC+1}")
    st = lambda v, fl: a(f"buffer_store_dwordx2 v[{ACC}:{ACC+1}], v{v}, s[32:35], 0 offen{fl}")
st(V_PA, " sc1" if "asc1" in opts else (" nt" if "ant" in opts else (" sc0 sc1" if "asys" in opts else (" sc0" if "asc0" in opts else ""))))
stamp(6)
a("s_cbranch_vccnz L_needb")
a("s_cmp_ge_u32 s9, 32")
a("s_cbranch_scc1 L_fin")
a("s_movk_i32 s12, 896")
if A4: a("s_mov_b32 exec_lo, -1")
a("s_mov_b32 exec_hi, 0x00ffffff")
a(f"v_mov_b32 v{V_CB}, v{V_CA}")
a("L_cons:")
c("---- final reduction of 112 partial sums of 4 output columns")
a("s_movk_i32 s11, 896")
a(f"s_mov_b32 s15, {SPIN}")
def ld2(r, v, s):
    a(f"buffer_load_dwordx4 v[{r}:{r+3}], v{v}, s[32:35], 0 offen sc1")
    a(f"buffer_load_dwordx4 v[{r+4}:{r+7}], v{v}, s[32:35], s{s} offen sc1")
def chk(r):
    for k in range(4):
        a(f"v_xor_b32 v{R+k}, s{60+k}, v{r+k}")
        a(f"v_xor_b32 v{R+4+k}, s{60+k}, v{r+4+k}")
    a(f"v_or3_b32 v2, v{R}, v{R+4}, v{R+1}")
    a(f"v_or3_b32 v3, v{R+5}, v{R+2}, v{R+6}")
    a(f"v_or3_b32 v2, v2, v{R+3}, v{R+7}")
    a("v_bitop3_b32 v2, v2, v3, s58 bitop3:0xa8")
    a("v_cmp_ne_u32 vcc, 0, v2")
    a(f"v_pk_add_f32 v[{R}:{R+1}], v[{R}:{R+1}], v[{R+4}:{R+5}]")
    a(f"v_pk_add_f32 v[{R+2}:{R+3}], v[{R+2}:{R+3}], v[{R+6}:{R+7}]")
ld2(P, V_CA, 11)
a("L_poll2:")
ld2(Q, V_CB, 12)
a("s_waitcnt vmcnt(2)")
chk(P)
a("s_cbranch_vccz L_poll2_ok")
ld2(P, V_CA, 11)
a("s_sub_u32 s15, s15, 1")
a("s_cbranch_scc1 L_end")
a("s_waitcnt vmcnt(2)")
chk(Q)
a("s_cbranch_vccnz L_poll2")
a("L_poll2_ok:")
if STAMPS: a("s_mov_b32 s87, s15")
a("s_mov_b32 exec_hi, -1")
a(f"v_permlane32_swap_b32 v{R}, v{R+2}")
a(f"v_permlane32_swap_b32 v{R+1}, v{R+3}")
a(f"v_add_f32 v{R}, v{R}, v{R+2}")
a(f"v_add_f32 v{R+1}, v{R+1}, v{R+3}")
a("s_nop 1")
a(f"v_permlane16_swap_b32 v{R}, v{R+1}")
a(f"v_add_f32 v{R}, v{R}, v{R+1}")
for ror in (8, 4, 2, 1):
    a("s_nop 1")
    a(f"v_add_f32_dpp v{R}, v{R}, v{R} row_ror:{ror} row_mask:0xf bank_mask:0xf")
a("s_mov_b32 exec_lo, 0x00010001")
a("s_mov_b32 exec_hi, 0x00010001")
a(f"v_cvt_pk_bf16_f32 v{R}, v{R}, v{R}")
a(f"buffer_store_short v{R}, v{V_OUT}, s[36:39], s59 offen" + (" sc1" if "osc1" in opts else (" nt" if "ont" in opts else "")))
a("s_or_b32 s10, s2, s8")
a("s_cbranch_scc1 L_fin")
a("s_mov_b64 exec, 1")
a("v_mov_b32 v2, s5")
a("buffer_store_dword v2, off, s[32:35], 0" + (" sc1" if "osc1" in opts else ""))
a("L_fin:")
XD = opt("xd", 0)
if XD:
    a("s_mov_b64 exec, -1")
    a("s_mov_b32 s34, 0x8000000")
    a("s_lshl_b32 s10, s2, 2")
    a("s_add_u32 s10, s10, s8")
    a(f"s_mul_i32 s10, s10, {XD*1024}")
    a("s_add_u32 s10, s10, 0x1000000")
    a(f"v_lshl_add_u32 v2, v{V_LANE}, 4, s10")
    fl = " sc1" if "xdsc1" in opts else (" nt" if "xdnt" in opts else "")
    for i in range(XD):
        a(f"buffer_store_dwordx4 v[16:19], v2, s[32:35], 0 offen{fl}")
        a("v_add_u32 v2, 1024, v2")
if AMP is not None:
    a("s_memrealtime s[92:93]")
    a("s_waitcnt lgkmcnt(0)")
    a(f"s_sub_u32 s94, {'s92' if AT == 7 else 's88'}, s90")
    a(f"s_mul_i32 s94, s94, {AMP}")
    a("s_add_u32 s94, s94, s92")
    a("L_amp:")
    a("s_memrealtime s[92:93]")
    a("s_waitcnt lgkmcnt(0)")
    a("s_sub_u32 s95, s92, s94")
    a("s_cmp_lt_i32 s95, 0")
    a("s_cbranch_scc1 L_amp")
if STAMPS:
    stamp(7)
    a("s_waitcnt vmcnt(0) lgkmcnt(0)")
    if "cnt" in opts:
        a(f"s_sub_u32 s66, {SPIN}, s86"); a(f"s_sub_u32 s67, {SPIN}, s87")
    a("s_mov_b64 exec, 1")
    a("s_add_u32 s32, s32, 0x8000000"); a("s_addc_u32 s33, s33, 0")
    for k in range(16):
        a(f"v_mov_b32 v{16+k}, s{64+k}")
    a(f"s_lshl_b32 s14, s2, 8")
    a("v_add_u32 v1, s14, v0")
    for k in range(4):
        a(f"buffer_store_dwordx4 v[{16+4*k}:{19+4*k}], v1, s[32:35], 0 offen offset:{16*k}")
a("L_end:")
a("s_endpgm")
a("L_poll1_again:")
a("s_sub_u32 s15, s15, 1")
a("s_cbranch_scc1 L_end")
poll1()
a("s_branch L_poll1")
c("some workgroup of this column block may sit on another die: write-through copy, poll both copies")
a("L_needb:")
st(V_PB, " sc1")
a("s_cmp_ge_u32 s9, 32")
a("s_cbranch_scc1 L_fin")
a(f"s_mov_b32 s12, {56*512}")
if A4: a("s_mov_b32 exec_lo, -1")
a("s_mov_b32 exec_hi, 0x00ffffff")
a("s_branch L_cons")
out = HDR + f"; @launch grid=(224,1,1) block=(256,1,1) lds=0\n" + '.amdgcn_target "amdgcn-amd-amdhsa--gfx950"\n'
out += entry(NAME + "_kernel") + a.text() + kd(NAME + "_kernel", 136, 96 if (STAMPS or AMP is not None) else 72)
print(out)
```

```python
import sys
from common import *
opts = set(sys.argv[1:])
def opt(name, default):
    for o in opts:
        if o.startswith(name + "="): return int(o[len(name)+1:], 0)
    return default
STAMPS = "stamps" in opts
AMP = opt("amp", None)
EARLY = opt("early", 4)
KE = opt("ke", 1)
XPOS = opt("xpos", 2)
FILL = opt("fill", 1)
A4 = opt("a4", 0)
KT = opt("kt", 7); NTM = opt("ntm", 0)
SL1 = opt("sl1", 0)
TWO = opt("two", 1)
DEPTH = opt("depth", 6)
B1 = opt("b1", 0); B2 = opt("b2", 1)
TAGB = 10
TM = (1 << TAGB) - 1
WB = 7340032
ID_OFF = 0x800
P1_OFF = 0x1000
P2A_OFF = 0x40000
P2B_OFF = 0xC0000
WS_BYTES = 0x140000
OOR = 0x40000000
SPIN = 1 << 18
IDC = 0x9E3779B1
a = Asm()
def c(s): a("; " + s)
AF = opt("af", 0); AT = opt("at", 7)
def stamp(k):
    if STAMPS: a(f"s_memrealtime s[{64+2*k}:{65+2*k}]")
    if AMP is not None and k == AF: a("s_memrealtime s[90:91]")
    if AMP is not None and k == AT and k != 7: a("s_memrealtime s[88:89]")
X, W, D, ACC = 8, 16, 80, 112
LO, HI, P, Q, PG, PU, Z, R = 16, 32, 48, 56, 64, 68, 72, 8
V_PW, V_LANE, V_P1S, V_P1G, V_CA, V_CB, V_PA, V_PB = 120, 121, 122, 123, 124, 125, 126, 127
V_OUT, V_TM, V_TA, V_TB, V_IDS, V_IDG, V_IDE, V_IDL = 128, 129, 130, 131, 132, 133, 134, 135
stamp(0)
a("s_load_dwordx2 s[16:17], s[0:1], 0")
a("s_load_dwordx2 s[20:21], s[0:1], 8")
a("s_load_dwordx2 s[24:25], s[0:1], 16")
a("s_load_dwordx2 s[28:29], s[0:1], 24")
a("s_load_dwordx2 s[36:37], s[0:1], 32")
a("s_load_dwordx2 s[32:33], s[0:1], 48")
a("v_readfirstlane_b32 s8, v0")
a("s_cmp_ge_u32 s2, 224")
a("s_cbranch_scc1 L_end")
c("s3 = x (K slice of phase 1, output column block of phase 2), s4 = m, s8 = wave")
a("s_and_b32 s3, s2, 7")
a("s_lshr_b32 s4, s2, 3")
a("s_lshr_b32 s8, s8, 6")
c("phase 1 unit: waves 0,1 gate chunk m, waves 2,3 up chunk (m+2)%28, half = w&1")
a("s_and_b32 s5, s8, 2")
a("s_add_u32 s15, s4, s5")
a("s_cmp_ge_u32 s15, 28")
a("s_cselect_b32 s5, 28, 0")
a("s_sub_u32 s15, s15, s5")
a("s_and_b32 s6, s8, 1")
a("v_bfe_u32 v2, v0, 3, 3")
a("v_and_b32 v3, 7, v0")
a("v_lshlrev_b32 v3, 4, v3")
a("s_mov_b32 s5, %d" % (16*7168))
a("v_mul_u32_u24 v1, s5, v2")
a("s_mul_i32 s5, s3, %d" % (128*7168))
a("v_add3_u32 v1, v1, v3, s5")
a("s_lshl_b32 s40, s15, 8")
a("s_lshl_b32 s5, s6, 7")
a("s_add_u32 s40, s40, s5")
for i in range(1, 16):
    a(f"s_add_u32 s{40+i}, s40, {i*7168}")
a("s_lshl_b32 s7, s3, 8")
a("v_lshl_add_u32 v6, v2, 5, s7")
for d, n in ((32, WS_BYTES), (16, 2048), (20, WB), (28, WB), (36, 2048)):
    a(f"s_mov_b32 s{d+2}, {n}")
    a(f"s_mov_b32 s{d+3}, 0x00020000")
a("s_cmp_lt_u32 s8, 2")
a("s_waitcnt lgkmcnt(0)")
a("s_cselect_b32 s20, s20, s24")
a("s_cselect_b32 s21, s21, s25")
ST1 = opt("st1", -1)
if ST1 == -1: stamp(1)
outst = []
for i in range(16):
    if i == XPOS:
        a(f"buffer_load_dwordx4 v[{X}:{X+3}], v6, s[16:19], 0 offen")
        a(f"buffer_load_dwordx4 v[{X+4}:{X+7}], v6, s[16:19], 0 offen offset:16")
        outst += ["x", "x"]
        a("s_load_dword s5, s[32:33], 0")
    a(f"buffer_load_dwordx4 v[{W+4*i}:{W+3+4*i}], v1, s[20:23], s{40+i} offen nt")
    outst.append("gu")
c("---- addresses of the later phases (in the shadow of the loads)")
a("v_bfe_u32 v5, v0, 4, 1")
a("v_bfe_u32 v6, v0, 5, 1")
a("v_and_b32 v7, 15, v0")
c("W_down tile: row = 128m + 64(w>>1) + 4(w&1) + 32 b5 + 2 b4 + 8k + e, 256 B at column 128x")
a("v_lshlrev_b32 v4, 12, v5")
a("v_lshl_add_u32 v4, v6, 16, v4")
a("v_lshl_add_u32 v4, v7, 4, v4")
a("s_lshl_b32 s10, s4, 18")
a("s_add_u32 s10, s10, s7")
a("s_lshr_b32 s11, s8, 1")
a("s_lshl_b32 s12, s11, 17")
a("s_add_u32 s10, s10, s12")
a("s_lshl_b32 s12, s6, 13")
a("s_add_u32 s10, s10, s12")
a("v_add_u32 v4, s10, v4")
a("s_movk_i32 s24, 0x4000")
a("s_mov_b32 s25, 0x8000")
a("s_mov_b32 s26, 0xc000")
def down(i):
    so = ["0", "s24", "s25", "s26"][i >> 1]
    off = " offset:2048" if i & 1 else ""
    a(f"buffer_load_dwordx4 v[{D+4*i}:{D+3+4*i}], v4, s[28:31], {so} offen{off} nt")
    outst.append("d")
a("s_mov_b32 s56, 0x05040100")
a("s_mov_b32 s57, 0x07060302")
a(f"s_movk_i32 s58, {TM}")
a(f"v_mov_b32 v{V_TM}, s58")
a("s_mul_i32 s9, s8, 28")
a("s_add_u32 s9, s9, s4")
a(f"v_and_b32 v{V_LANE}, 63, v0")
c("P1 publish address")
a(f"v_lshl_add_u32 v{V_P1S}, v6, 8, v3")
a("s_lshl_b32 s27, s15, 3")
a("s_add_u32 s27, s27, s3")
a("s_lshl_b32 s27, s27, 10")
a("s_lshl_b32 s12, s6, 9")
a("s_add_u32 s27, s27, s12")
a("s_lshl_b32 s12, s11, 7")
a("s_add_u32 s27, s27, s12")
a(f"s_add_u32 s27, s27, {P1_OFF}")
c("P1 gather address")
a("s_lshl_b32 s12, s4, 13")
a("s_lshl_b32 s13, s8, 8")
a("s_add_u32 s12, s12, s13")
a(f"s_add_u32 s12, s12, {P1_OFF}")
a(f"v_lshl_add_u32 v{V_P1G}, v2, 10, v3")
a(f"v_add_u32 v{V_P1G}, s12, v{V_P1G}")
c("P2 consumer addresses (A: same-L2 copy, B: write-through copy)")
a("s_lshl_b32 s10, s3, 5")
a("s_add_u32 s10, s10, s9")
a("s_mul_i32 s10, s10, 1792")
a(f"s_add_u32 s10, s10, {P2A_OFF}")
a("s_cmp_lt_u32 s9, 32")
a(f"s_cselect_b32 s10, s10, {OOR}")
a(f"v_lshl_add_u32 v{V_CA}, v{V_LANE}, 4, s10")
a(f"v_lshl_add_u32 v{V_PW}, v{V_LANE}, 7, s10")
a("s_mul_i32 s13, s3, 57344")
a("s_lshl_b32 s12, s9, 4")
a("s_add_u32 s12, s12, s13")
a(f"s_add_u32 s12, s12, {P2B_OFF}")
a(f"v_lshl_add_u32 v{V_CB}, v{V_LANE}, 9, s12")
c("P2 producer addresses")
a("v_bfe_u32 v2, v0, 4, 2")
a("v_lshrrev_b32 v3, 1, v7")
a("v_lshl_add_u32 v2, v2, 3, v3")
a("v_and_b32 v7, 1, v0")
a("s_lshl_b32 s12, s4, 2")
a("s_add_u32 s12, s12, s8")
a("s_lshl_b32 s10, s12, 4")
a("s_add_u32 s10, s10, s13")
a(f"s_add_u32 s10, s10, {P2A_OFF}")
a(f"v_mul_u32_u24 v{V_PA}, 1792, v2")
a(f"v_lshl_add_u32 v{V_PA}, v7, 3, v{V_PA}")
a(f"v_add_u32 v{V_PA}, s10, v{V_PA}")
a("s_lshl_b32 s10, s12, 9")
a("s_add_u32 s10, s10, s13")
a(f"s_add_u32 s10, s10, {P2B_OFF}")
a(f"v_lshlrev_b32 v{V_PB}, 4, v2")
a(f"v_lshl_add_u32 v{V_PB}, v7, 3, v{V_PB}")
a(f"v_add_u32 v{V_PB}, s10, v{V_PB}")
c("output address")
a("s_and_b32 s59, s9, 7")
a("s_lshr_b32 s12, s9, 3")
a("s_lshl_b32 s59, s59, 5")
a("s_lshl_b32 s12, s12, 2")
a("s_add_u32 s59, s59, s12")
a("s_add_u32 s59, s59, s7")
a(f"v_lshlrev_b32 v{V_OUT}, 1, v5")
a(f"v_lshl_add_u32 v{V_OUT}, v6, 4, v{V_OUT}")
c("tag selectors of the P2 stores")
a(f"v_mad_u32_u24 v{V_TB}, v7, {TAGB}, {TAGB}")
a(f"v_mul_u32_u24 v{V_TA}, s58, v7")
c("die id words")
a("s_getreg_b32 s14, hwreg(HW_REG_XCC_ID, 0, 4)")
a("s_lshl_b32 s10, s3, 7")
a(f"s_add_u32 s10, s10, {ID_OFF}")
a(f"v_min_u32 v{V_IDE}, 27, v{V_LANE}")
a(f"v_lshl_add_u32 v{V_IDG}, v{V_IDE}, 2, s10")
a("s_lshl_b32 s12, s4, 2")
a("s_add_u32 s10, s10, s12")
a("s_cmp_eq_u32 s8, 0")
a(f"s_cselect_b32 s10, s10, {OOR}")
a(f"v_mov_b32 v{V_IDS}, s10")
a(f"s_mov_b32 s12, {IDC}")
a(f"v_mul_lo_u32 v{V_IDE}, v{V_IDE}, s12")
a("s_mul_i32 s13, s4, s12")
for r in range(ACC, ACC+8):
    a(f"v_mov_b32 v{r}, 0")
def wait_idx(idx): a(f"s_waitcnt vmcnt({len(outst) - 1 - idx})")
def nth(kind, count): return [i for i, k in enumerate(outst) if k == kind][count-1]
c("---- phase 1: partial gate / up sums over 128 rows")
for k in range(8):
    wait_idx(max(nth("gu", 2*k+2), nth("x", 2)))
    if k == ST1: stamp(1)
    if k == 0:
        a("s_waitcnt lgkmcnt(0)")
        a("s_mov_b64 exec, 0x3fff")
        a(f"buffer_load_dword v{V_IDL}, v{V_PW}, s[32:35], 0 offen sc1"); outst.append("p")
        a("s_add_u32 s5, s5, 1")
        a("s_lshl_b32 s10, s5, 4")
        a("s_or_b32 s14, s14, s10")
        a("s_add_u32 s13, s13, s14")
        a("s_mov_b64 exec, 1")
        a(f"v_mov_b32 v{V_PW}, s13")
        a(f"buffer_store_dword v{V_PW}, v{V_IDS}, s[32:35], 0 offen sc1"); outst.append("p")
        a("s_mov_b64 exec, -1")
        a(f"s_and_b32 s60, s5, {TM}")
        a(f"s_bfe_u32 s61, s5, {TAGB | (TAGB << 16)}")
        a(f"s_xor_b32 s62, s60, {TM}")
        a(f"s_bfe_u32 s63, s5, {2*TAGB | (TAGB << 16)}")
        a(f"v_lshrrev_b32 v{V_TB}, v{V_TB}, s5")
        a(f"v_xor_b32 v{V_TA}, s5, v{V_TA}")
        a(f"v_add_u32 v{V_IDE}, s14, v{V_IDE}")
    if k == KE:
        for i in range(EARLY): down(i)
    if k == KT:
        for i in range(EARLY, EARLY + NTM): down(i)
    r0 = W + 8*k; r1 = r0 + 4
    for d in range(4):
        a(f"v_perm_b32 v2, v{r1+d}, v{r0+d}, s56")
        a(f"v_perm_b32 v3, v{r1+d}, v{r0+d}, s57")
        a(f"v_dot2c_f32_bf16 v{ACC+2*d}, v2, v{X+k}")
        a(f"v_dot2c_f32_bf16 v{ACC+2*d+1}, v3, v{X+k}")
for k in range(4):
    a(f"v_permlane32_swap_b32 v{ACC+k}, v{ACC+4+k}")
for k in range(4):
    a(f"v_add_f32 v{ACC+k}, v{ACC+k}, v{ACC+4+k}")
a("s_nop 0")
a(f"v_permlane16_swap_b32 v{ACC}, v{ACC+2}")
a(f"v_permlane16_swap_b32 v{ACC+1}, v{ACC+3}")
a(f"v_add_f32 v{ACC}, v{ACC}, v{ACC+2}")
a(f"v_add_f32 v{ACC+1}, v{ACC+1}, v{ACC+3}")
a("s_nop 0")
a(f"v_add_f32_dpp v{Z}, v{ACC}, v{ACC} row_ror:8 row_mask:0xf bank_mask:0xf")
a(f"v_add_f32_dpp v{Z+2}, v{ACC}, v{ACC} row_ror:8 row_mask:0xf bank_mask:0xf")
a(f"v_add_f32_dpp v{Z+1}, v{ACC+1}, v{ACC+1} row_ror:8 row_mask:0xf bank_mask:0xf")
a(f"v_add_f32_dpp v{Z+3}, v{ACC+1}, v{ACC+1} row_ror:8 row_mask:0xf bank_mask:0xf")
a(f"v_permlane16_swap_b32 v{Z}, v{Z+2}")
a("s_nop 0")
a(f"v_permlane16_swap_b32 v{Z+1}, v{Z+3}")
a("s_mov_b32 exec_lo, 0xff")
a("s_mov_b32 exec_hi, 0xff")
for k in (0, 2, 1, 3):
    a(f"v_bfi_b32 v{Z+k}, v{V_TM}, s{60+k}, v{Z+k}")
a(f"buffer_store_dwordx4 v[{Z}:{Z+3}], v{V_P1S}, s[32:35], s27 offen sc1")
a("s_mov_b64 exec, -1")
stamp(2)
a("s_barrier")
NR = 8 - EARLY - NTM
for i in range(EARLY + NTM, 8): down(i)
for r in range(ACC, ACC+8):
    a(f"v_mov_b32 v{r}, 0")
for k in range(4):
    a(f"v_mov_b32 v{R+k}, 0")
a(f"s_mov_b32 s15, {SPIN}")
RA, RB = 64, 72
def poll1(r):
    a(f"buffer_load_dwordx4 v[{r}:{r+3}], v{V_P1G}, s[32:35], 0 offen sc1")
    a(f"buffer_load_dwordx4 v[{r+4}:{r+7}], v{V_P1G}, s[32:35], 0 offen offset:128 sc1")
def idl(): a(f"buffer_load_dword v{V_IDL}, v{V_IDG}, s[32:35], 0 offen sc1")
perms = []
for k in range(4):
    r0 = D + 8*k; r1 = r0 + 4
    for d in range(4):
        perms.append(f"v_perm_b32 v{LO+4*k+d}, v{r1+d}, v{r0+d}, s56")
        perms.append(f"v_perm_b32 v{HI+4*k+d}, v{r1+d}, v{r0+d}, s57")
nf = 8 if FILL else 0
ne = min(8 * ((EARLY + NTM) // 2), 32 - nf)
FIRST = opt("first", 1)
if FIRST:
    a(f"s_waitcnt vmcnt({NR + 1})")
    if B1: a("s_barrier")
    for p in perms[:ne]: a(p)
    if SL1: a(f"s_sleep {SL1}")
    if ST1 == 8: stamp(1)
    idl(); poll1(RA)
    if TWO:
        a(f"s_waitcnt vmcnt({NR + 3})")
        if B2: a("s_barrier")
        stamp(3)
        poll1(RB)
        a("s_waitcnt vmcnt(5)")
    else:
        stamp(3)
        a("s_waitcnt vmcnt(3)")
else:
    TWO = 0
    a(f"s_waitcnt vmcnt({NR})")
    a("s_barrier")
    stamp(3)
    idl(); poll1(RA)
    for p in perms[:ne]: a(p)
    a("s_waitcnt vmcnt(3)")
stamp(4)
for p in perms[ne:32-nf]: a(p)
fill = perms[32-nf:]
def gap(n):
    if FILL:
        for _ in range(n): a(fill.pop(0))
    else: a(f"s_nop {n-1}")
c("---- gather the 8 partial sums of 32 gate / up columns")
PG, PU = 48, 52
def chk1(r):
    for k in range(4):
        a(f"v_xor_b32 v{PG+k}, s{60+k}, v{r+k}")
        a(f"v_xor_b32 v{PU+k}, s{60+k}, v{r+4+k}")
    a(f"v_or3_b32 v2, v{PG}, v{PU}, v{PG+1}")
    a(f"v_or3_b32 v3, v{PU+1}, v{PG+2}, v{PU+2}")
    a(f"v_or3_b32 v2, v2, v{PG+3}, v{PU+3}")
    a("v_bitop3_b32 v2, v2, v3, s58 bitop3:0xa8")
    a("v_cmp_ne_u32 vcc, 0, v2")
    for k in range(4):
        a(f"v_permlane32_swap_b32 v{PG+k}, v{PU+k}")
    for k in range(4):
        a(f"v_add_f32 v{PG+k}, v{PG+k}, v{PU+k}")
a(f"s_waitcnt vmcnt({2 if TWO else 0})")
chk1(RA)
a("s_cbranch_vccnz L_poll1_again")
a("L_poll1_ok:")
stamp(5)
if STAMPS: a("s_mov_b32 s86, s15")
gap(1)
a(f"v_permlane16_swap_b32 v{PG}, v{PG+2}")
a(f"v_permlane16_swap_b32 v{PG+1}, v{PG+3}")
a(f"v_add_f32 v{PG}, v{PG}, v{PG+2}")
a(f"v_add_f32 v{PG+1}, v{PG+1}, v{PG+3}")
gap(1)
a(f"v_add_f32_dpp v{PG}, v{PG}, v{PG} row_ror:8 row_mask:0xf bank_mask:0xf")
a(f"v_add_f32_dpp v{PG+1}, v{PG+1}, v{PG+1} row_ror:8 row_mask:0xf bank_mask:0xf")
a(f"v_cvt_pk_bf16_f32 v{PG}, v{PG}, v{PG+1}")
gap(2)
a(f"v_mov_b32_dpp v{PU}, v{PG} row_ror:4 row_mask:0xf bank_mask:0xf")
gap(2)
a(f"v_permlane32_swap_b32 v{PG}, v{PU}")
c("h = bf16(bf16(g) * (g > 0) * bf16(u))")
a(f"v_lshlrev_b32 v{PG+2}, 16, v{PG}")
a(f"v_and_b32 v{PG+3}, 0xffff0000, v{PG}")
a(f"v_lshlrev_b32 v{PU+2}, 16, v{PU}")
a(f"v_pk_mul_f32 v[{PG}:{PG+1}], v[{PG+2}:{PG+3}], 0")
a(f"v_and_b32 v{PU+3}, 0xffff0000, v{PU}")
a(f"v_max_f32 v{PG+2}, v{PG+2}, v{PG}")
a(f"v_max_f32 v{PG+3}, v{PG+3}, v{PG+1}")
a(f"v_pk_mul_f32 v[{PG+2}:{PG+3}], v[{PG+2}:{PG+3}], v[{PU+2}:{PU+3}]")
a(f"v_cvt_pk_bf16_f32 v{PG}, v{PG+2}, v{PG+3}")
gap(2)
c("---- phase 2: 32 rows of the W_down tile")
for k in range(4):
    for d in range(4):
        a(f"v_dot2c_f32_bf16_dpp v{ACC+2*d}, v{PG}, v{LO+4*k+d} row_newbcast:{k} row_mask:0xf bank_mask:0xf")
        a(f"v_dot2c_f32_bf16_dpp v{ACC+2*d+1}, v{PG}, v{HI+4*k+d} row_newbcast:{k} row_mask:0xf bank_mask:0xf")
for k in range(4):
    a(f"v_permlane32_swap_b32 v{ACC+k}, v{ACC+4+k}")
for k in range(4):
    a(f"v_add_f32 v{ACC+k}, v{ACC+k}, v{ACC+4+k}")
a(f"v_cmp_ne_u32 vcc, v{V_IDL}, v{V_IDE}")
a(f"v_permlane16_swap_b32 v{ACC}, v{ACC+2}")
a(f"v_permlane16_swap_b32 v{ACC+1}, v{ACC+3}")
a(f"v_add_f32 v{ACC}, v{ACC}, v{ACC+2}")
a(f"v_add_f32 v{ACC+1}, v{ACC+1}, v{ACC+3}")
if A4:
    a("s_mov_b32 s10, 0x55555555")
    a(f"v_mov_b32_dpp v{ACC+2}, v{ACC} quad_perm:[1,1,3,3] row_mask:0xf bank_mask:0xf")
    a(f"v_mov_b32_dpp v{ACC+3}, v{ACC+1} quad_perm:[1,1,3,3] row_mask:0xf bank_mask:0xf")
    a("s_mov_b32 exec_lo, s10")
    a("s_mov_b32 exec_hi, s10")
    for k in range(4):
        a(f"v_bfi_b32 v{ACC+k}, v{V_TM}, s{60+k}, v{ACC+k}")
    st = lambda v, fl: a(f"buffer_store_dwordx4 v[{ACC}:{ACC+3}], v{v}, s[32:35], 0 offen{fl}")
else:
    a(f"v_bfi_b32 v{ACC}, s58, v{V_TA}, v{ACC}")
    a(f"v_bfi_b32 v{ACC+1}, s58, v{V_TB}, v{ACC+1}")
    st = lambda v, fl: a(f"buffer_store_dwordx2 v[{ACC}:{ACC+1}], v{v}, s[32:35], 0 offen{fl}")
st(V_PA, " sc1" if "asc1" in opts else (" nt" if "ant" in opts else (" sc0 sc1" if "asys" in opts else (" sc0" if "asc0" in opts else ""))))
stamp(6)
a("s_cbranch_vccnz L_needb")
a("s_cmp_ge_u32 s9, 32")
a("s_cbranch_scc1 L_fin")
a("s_movk_i32 s12, 896")
if A4: a("s_mov_b32 exec_lo, -1")
a("s_mov_b32 exec_hi, 0x00ffffff")
a(f"v_mov_b32 v{V_CB}, v{V_CA}")
a("L_cons:")
c("---- final reduction of 112 partial sums of 4 output columns")
a("s_movk_i32 s11, 896")
a(f"s_mov_b32 s15, {SPIN}")
def ld2(r, v, s):
    a(f"buffer_load_dwordx4 v[{r}:{r+3}], v{v}, s[32:35], 0 offen sc1")
    a(f"buffer_load_dwordx4 v[{r+4}:{r+7}], v{v}, s[32:35], s{s} offen sc1")
def chk(r):
    for k in range(4):
        a(f"v_xor_b32 v{R+k}, s{60+k}, v{r+k}")
        a(f"v_xor_b32 v{R+4+k}, s{60+k}, v{r+4+k}")
    a(f"v_or3_b32 v2, v{R}, v{R+4}, v{R+1}")
    a(f"v_or3_b32 v3, v{R+5}, v{R+2}, v{R+6}")
    a(f"v_or3_b32 v2, v2, v{R+3}, v{R+7}")
    a("v_bitop3_b32 v2, v2, v3, s58 bitop3:0xa8")
    a("v_cmp_ne_u32 vcc, 0, v2")
    a(f"v_pk_add_f32 v[{R}:{R+1}], v[{R}:{R+1}], v[{R+4}:{R+5}]")
    a(f"v_pk_add_f32 v[{R+2}:{R+3}], v[{R+2}:{R+3}], v[{R+6}:{R+7}]")
ld2(P, V_CA, 11)
a("L_poll2:")
ld2(Q, V_CB, 12)
a("s_waitcnt vmcnt(2)")
chk(P)
a("s_cbranch_vccz L_poll2_ok")
ld2(P, V_CA, 11)
a("s_sub_u32 s15, s15, 1")
a("s_cbranch_scc1 L_end")
a("s_waitcnt vmcnt(2)")
chk(Q)
a("s_cbranch_vccnz L_poll2")
a("L_poll2_ok:")
if STAMPS: a("s_mov_b32 s87, s15")
a("s_mov_b32 exec_hi, -1")
a(f"v_permlane32_swap_b32 v{R}, v{R+2}")
a(f"v_permlane32_swap_b32 v{R+1}, v{R+3}")
a(f"v_add_f32 v{R}, v{R}, v{R+2}")
a(f"v_add_f32 v{R+1}, v{R+1}, v{R+3}")
a("s_nop 1")
a(f"v_permlane16_swap_b32 v{R}, v{R+1}")
a(f"v_add_f32 v{R}, v{R}, v{R+1}")
for ror in (8, 4, 2, 1):
    a("s_nop 1")
    a(f"v_add_f32_dpp v{R}, v{R}, v{R} row_ror:{ror} row_mask:0xf bank_mask:0xf")
a("s_mov_b32 exec_lo, 0x00010001")
a("s_mov_b32 exec_hi, 0x00010001")
a(f"v_cvt_pk_bf16_f32 v{R}, v{R}, v{R}")
a(f"buffer_store_short v{R}, v{V_OUT}, s[36:39], s59 offen" + (" sc1" if "osc1" in opts else (" nt" if "ont" in opts else "")))
a("s_or_b32 s10, s2, s8")
a("s_cbranch_scc1 L_fin")
a("s_mov_b64 exec, 1")
a("v_mov_b32 v2, s5")
a("buffer_store_dword v2, off, s[32:35], 0" + (" sc1" if "osc1" in opts else ""))
a("L_fin:")
XD = opt("xd", 0)
if XD:
    a("s_mov_b64 exec, -1")
    a("s_mov_b32 s34, 0x8000000")
    a("s_lshl_b32 s10, s2, 2")
    a("s_add_u32 s10, s10, s8")
    a(f"s_mul_i32 s10, s10, {XD*1024}")
    a("s_add_u32 s10, s10, 0x1000000")
    a(f"v_lshl_add_u32 v2, v{V_LANE}, 4, s10")
    fl = " sc1" if "xdsc1" in opts else (" nt" if "xdnt" in opts else "")
    for i in range(XD):
        a(f"buffer_store_dwordx4 v[16:19], v2, s[32:35], 0 offen{fl}")
        a("v_add_u32 v2, 1024, v2")
if AMP is not None:
    a("s_memrealtime s[92:93]")
    a("s_waitcnt lgkmcnt(0)")
    a(f"s_sub_u32 s94, {'s92' if AT == 7 else 's88'}, s90")
    a(f"s_mul_i32 s94, s94, {AMP}")
    a("s_add_u32 s94, s94, s92")
    a("L_amp:")
    a("s_memrealtime s[92:93]")
    a("s_waitcnt lgkmcnt(0)")
    a("s_sub_u32 s95, s92, s94")
    a("s_cmp_lt_i32 s95, 0")
    a("s_cbranch_scc1 L_amp")
if STAMPS:
    stamp(7)
    a("s_waitcnt vmcnt(0) lgkmcnt(0)")
    if "cnt" in opts:
        a(f"s_sub_u32 s66, {SPIN}, s86"); a(f"s_sub_u32 s67, {SPIN}, s87")
    a("s_mov_b64 exec, 1")
    a("s_add_u32 s32, s32, 0x8000000"); a("s_addc_u32 s33, s33, 0")
    for k in range(16):
        a(f"v_mov_b32 v{16+k}, s{64+k}")
    a(f"s_lshl_b32 s14, s2, 8")
    a("v_add_u32 v1, s14, v0")
    for k in range(4):
        a(f"buffer_store_dwordx4 v[{16+4*k}:{19+4*k}], v1, s[32:35], 0 offen offset:{16*k}")
a("L_end:")
a("s_endpgm")
a("L_poll1_again:")
RS = RB if TWO else RA
if TWO:
    if STAMPS: a("s_sub_u32 s15, s15, 1")
    a("s_waitcnt vmcnt(0)")
    chk1(RB)
    a("s_cbranch_vccz L_poll1_ok")
a("L_spin:")
a("s_sub_u32 s15, s15, 1")
a("s_cbranch_scc1 L_end")
a("s_mov_b64 exec, vcc")
poll1(RS)
a("s_mov_b64 exec, -1")
a(f"s_waitcnt vmcnt({2*(DEPTH-1)})")
chk1(RS)
a("s_cbranch_vccnz L_spin")
a("s_branch L_poll1_ok")
c("some workgroup of this column block may sit on another die: write-through copy, poll both copies")
a("L_needb:")
st(V_PB, " sc1")
a("s_cmp_ge_u32 s9, 32")
a("s_cbranch_scc1 L_fin")
a(f"s_mov_b32 s12, {56*512}")
if A4: a("s_mov_b32 exec_lo, -1")
a("s_mov_b32 exec_hi, 0x00ffffff")
a("s_branch L_cons")
out = HDR + f"; @launch grid=(224,1,1) block=(256,1,1) lds=0\n" + '.amdgcn_target "amdgcn-amd-amdhsa--gfx950"\n'
out += entry(NAME + "_kernel") + a.text() + kd(NAME + "_kernel", 136, 96 if (STAMPS or AMP is not None) else 72)
print(out)
```
